```python
import torch

def _softmax(x, axis=-1):
    return torch.softmax(x, dim=axis)
def _gelu(x):
    return torch.nn.functional.gelu(x, approximate="tanh")
def _silu(x):
    return torch.nn.functional.silu(x)
def _sigmoid(x):
    return torch.sigmoid(x)
def _layernorm(x, axis=-1, eps=1e-5):
    m = x.mean(dim=axis, keepdim=True)
    v = x.var(dim=axis, keepdim=True, unbiased=False)
    return (x - m) / torch.sqrt(v + eps)
def _scatter_add(tgt, idx, src, axis=0):
    return tgt.clone().index_add_(axis, idx, src)
def _segment_sum(src, seg, n):
    out = torch.zeros((n,) + src.shape[1:], dtype=src.dtype)
    return out.index_add_(0, seg, src)
def _pad(x, pw):
    flat = tuple(v for pair in reversed(pw) for v in pair)
    return torch.nn.functional.pad(x, flat)

kernel_name = 'interleave_layers__sliding_local_dilated__mixer_s_mlp__prompt'

def setup_inputs():

    _w = (lambda a: (lambda t: t.to(torch.bfloat16) if t.is_floating_point() else t)(torch.as_tensor(a)))
    def _A_setup():
        B, S, D = 1, 2048, 448
        return {
            "x": _w((lambda *s: torch.randn(*s, dtype=torch.bfloat16) * 0.05)(B, S, D)),
            "wqkv": _w((lambda *s: torch.randn(*s, dtype=torch.bfloat16) * 0.1)(D, 3 * D)),
            "wo": _w((lambda *s: torch.randn(*s, dtype=torch.bfloat16) * 0.1)(D, D)),
        }
    _A_in = _A_setup()

    def _B_setup():
        B, S, D, F = 1, 2048, 448, 1792
        return {
            "x":  _w((lambda *s: torch.randn(*s, dtype=torch.bfloat16) * 0.05)(B, S, D)),
            "w1": _w((lambda *s: torch.randn(*s, dtype=torch.bfloat16) * 3.2)(D, D) * (D ** -0.5)),
            "w2": _w((lambda *s: torch.randn(*s, dtype=torch.bfloat16) * 3.2)(D, D) * (D ** -0.5)),
            "w3": _w((lambda *s: torch.randn(*s, dtype=torch.bfloat16) * 3.2)(D, F) * (D ** -0.5)),
            "w4": _w((lambda *s: torch.randn(*s, dtype=torch.bfloat16) * 3.2)(F, D) * (F ** -0.5)),
        }
    _B_in = _B_setup()

    return {
        "A_x": _A_in["x"],
        "A_wqkv": _A_in["wqkv"],
        "A_wo": _A_in["wo"],
        "B_x": _B_in["x"],
        "B_w1": _B_in["w1"],
        "B_w2": _B_in["w2"],
        "B_w3": _B_in["w3"],
        "B_w4": _B_in["w4"],
    }

def reference(A_x, A_wqkv, A_wo, B_x, B_w1, B_w2, B_w3, B_w4):
    def _A_ref(x, wqkv, wo):
        B, S, D = x.shape
        H = 16; Dh = D // H
        W, dil = 8, 2
        qkv = (lambda x, *d: x.permute(*d))((x @ wqkv).reshape(B, S, 3, H, Dh), 2, 0, 3, 1, 4)
        q, k, v = qkv[0], qkv[1], qkv[2]
        scale = Dh ** -0.5
        pos = torch.arange(S)
        off = torch.arange(W) * dil
        idx = pos[:, None] - off[None, :]
        mask = idx >= 0
        idx_c = torch.where(mask, idx, 0).reshape(-1)
        kg = k[:, :, idx_c, :].reshape(B, H, S, W, Dh)
        vg = v[:, :, idx_c, :].reshape(B, H, S, W, Dh)
        logits = torch.einsum("bhsd,bhswd->bhsw", q, kg) * scale
        logits = torch.where(mask[None, None, :, :], logits, -1e9)
        attn = _softmax(logits, axis=-1)
        o = torch.einsum("bhsw,bhswd->bhsd", attn, vg)
        return (lambda x, *d: x.permute(*d))(o, 0, 2, 1, 3).reshape(B, S, D) @ wo

    def _B_ref(x, w1, w2, w3, w4):
        B, S, D = x.shape
        h = _gelu(_layernorm(x, axis=-1) @ w1)
        c = D // 4
        g0 = _pad(h[:, :, 0*c:1*c], ((0, 0), (1, 0), (0, 0)))[:, :S, :]
        g1 = _pad(h[:, :, 1*c:2*c], ((0, 0), (0, 1), (0, 0)))[:, 1:, :]
        g2 = _pad(h[:, :, 2*c:3*c], ((0, 0), (2, 0), (0, 0)))[:, :S, :]
        g3 = _pad(h[:, :, 3*c:   ], ((0, 0), (0, 2), (0, 0)))[:, 2:, :]
        hs = torch.concatenate([g0, g1, g2, g3], axis=-1) @ w2
        x1 = x + hs
        h2 = _gelu(_layernorm(x1, axis=-1) @ w3) @ w4
        return x1 + h2

    x = A_x
    x = x + _A_ref(_layernorm(x, axis=-1), A_wqkv, A_wo)
    x = x + _B_ref(_layernorm(x, axis=-1), B_w1, B_w2, B_w3, B_w4)
    x = x + _A_ref(_layernorm(x, axis=-1), A_wqkv, A_wo)
    x = x + _B_ref(_layernorm(x, axis=-1), B_w1, B_w2, B_w3, B_w4)
    return x
```

```python
import re
import struct

REG_RE = re.compile(r"^(-?)(abs\()?([vas])(?:(\d+)|\[(\d+):(\d+)\])\)?$")

TRANS = ("v_exp_f32", "v_log_f32", "v_rcp_f32", "v_rsq_f32", "v_sqrt_f32", "v_sin_f32", "v_cos_f32")


def f32hex(x):
    return "0x%08x" % struct.unpack("<I", struct.pack("<f", x))[0]


def regs_of(op):
    op = op.strip()
    m = REG_RE.match(op)
    if m:
        f = m.group(3)
        if m.group(4) is not None:
            return {(f, int(m.group(4)))}
        return {(f, i) for i in range(int(m.group(5)), int(m.group(6)) + 1)}
    if op in ("vcc", "vcc_lo", "vcc_hi"):
        return {("s", "vcc")}
    if op == "exec":
        return {("s", "exec")}
    if op == "m0":
        return {("s", "m0")}
    return set()


class Inst:
    __slots__ = ("text", "mn", "ops", "cls", "wr", "rd", "states")

    def __init__(self, text):
        self.text = text
        t = text.split(";")[0].strip()
        parts = t.split(None, 1)
        self.mn = parts[0] if parts else ""
        rest = parts[1] if len(parts) > 1 else ""
        core = rest
        m = re.search(r"\s(quad_perm|row_|wave_|offset|offen|idxen|lds|sc0|sc1|nt|bank_mask|op_sel|neg_|cbsz|abid|blgp)", core)
        if m:
            core = core[:m.start()]
        self.ops = [o.strip() for o in core.split(",")] if core.strip() else []
        self.cls = "other"
        self.wr = set()
        self.rd = set()
        self.states = 1
        self._classify(rest)

    def _classify(self, rest):
        mn = self.mn
        ops = self.ops
        R = [regs_of(o) for o in ops]
        if mn == "s_nop":
            self.cls = "nop"
            self.states = int(ops[0], 0) + 1
            return
        if mn.startswith("v_mfma"):
            self.cls = "mfma"
            self.wr = set(R[0])
            self.rd = R[1] | R[2] | R[3]
            return
        if mn.startswith("v_"):
            self.cls = "valu"
            if "_dpp" in mn or "quad_perm" in rest or "row_" in rest:
                self.cls = "dpp"
            if mn in TRANS:
                self.cls = "trans"
            if mn.startswith("v_dot2"):
                self.cls = "dot"
            if mn.startswith("v_permlane"):
                self.cls = "permlane"
                self.wr = R[0] | R[1]
                self.rd = R[0] | R[1]
                return
            if mn.startswith("v_readfirstlane") or mn.startswith("v_readlane"):
                self.cls = "readlane"
            self.wr = set(R[0])
            self.rd = set()
            for r in R[1:]:
                self.rd |= r
            if mn.startswith("v_cmp") and not ops[0].startswith(("vcc", "s")):
                pass
            if mn.startswith(("v_fmac", "v_dot2c", "v_mac")):
                self.rd |= self.wr
            if mn.startswith("v_cndmask") and len(ops) == 3:
                self.rd |= {("s", "vcc")}
            if mn.startswith(("v_add_co", "v_sub_co", "v_addc_co", "v_subb_co")):
                self.wr |= R[1]
            if mn.startswith(("v_addc_co", "v_subb_co")):
                self.rd |= {("s", "vcc")}
            return
        if mn.startswith("ds_"):
            self.cls = "lds"
            if mn.startswith(("ds_read", "ds_bpermute", "ds_permute", "ds_swizzle")):
                self.wr = set(R[0])
                for r in R[1:]:
                    self.rd |= r
            else:
                for r in R:
                    self.rd |= r
            return
        if mn.startswith(("buffer_", "global_", "flat_")):
            self.cls = "vmem"
            is_store = "store" in mn or ("atomic" in mn)
            is_lds = rest.rstrip().endswith(" lds") or "load_lds" in mn
            if is_store or is_lds:
                for r in R:
                    self.rd |= r
            else:
                self.wr = set(R[0])
                for r in R[1:]:
                    self.rd |= r
            return
        if mn.startswith("s_"):
            self.cls = "salu"
            if R and not mn.startswith(("s_cmp", "s_cbranch", "s_branch", "s_waitcnt", "s_barrier", "s_endpgm",
                                        "s_setprio", "s_sleep", "s_bitcmp")):
                self.wr = set(R[0])
                for r in R[1:]:
                    self.rd |= r
            else:
                for r in R:
                    self.rd |= r
            return


VALU_LIKE = ("valu", "dpp", "trans", "dot", "readlane", "permlane")


def is_512_mfma(i):
    return "32x32" in i.mn


def need_states(prod, cons):
    need = 0
    pw = prod.wr
    if not pw:
        return 0
    pv = {r for r in pw if r[0] in ("v", "a")}
    ps = {r for r in pw if r[0] == "s"}
    if prod.cls == "mfma":
        passes = 8 if is_512_mfma(prod) else 4
        tbl_valu = {4: 8, 8: 12}[passes]
        tbl_ab = {4: 8, 8: 12}[passes]
        tbl_c = {4: 6, 8: 10}[passes]
        if cons.cls == "mfma":
            ab = regs_of(cons.ops[1]) | regs_of(cons.ops[2])
            c = regs_of(cons.ops[3])
            if pv & ab:
                need = max(need, tbl_ab)
            if pv & c and c != pw:
                need = max(need, tbl_c)
        else:
            if pv & (cons.rd | cons.wr):
                need = max(need, tbl_valu)
        return need
    if prod.cls in VALU_LIKE:
        if pv:
            hit = pv & cons.rd
            if cons.cls == "mfma" and hit:
                need = max(need, 2)
            if cons.cls == "dpp" and hit:
                need = max(need, 2)
            if cons.cls == "permlane" and hit:
                need = max(need, 2)
            if cons.cls == "readlane" and hit:
                need = max(need, 1)
            if prod.cls == "trans" and hit and cons.cls != "trans":
                need = max(need, 1)
            if prod.cls == "trans" and hit and cons.cls == "trans":
                need = max(need, 1)
            if prod.cls == "dot" and (pv & (cons.rd | cons.wr)):
                if not (cons.cls == "dot" and cons.mn == prod.mn and (pv & regs_of(cons.ops[-1])) and not (pv & (regs_of(cons.ops[1]) | regs_of(cons.ops[2])))):
                    need = max(need, 3)
            if cons.cls == "vmem" and (pv & cons.rd):
                pass
        if ps:
            hit = ps & cons.rd
            if hit and cons.cls == "vmem":
                need = max(need, 5)
            if hit and cons.cls in VALU_LIKE:
                need = max(need, 2)
            if hit and cons.cls == "readlane":
                need = max(need, 4)
        return need
    if prod.cls == "salu":
        if ("s", "m0") in pw and (cons.cls == "vmem" and ("lds" in cons.text)):
            need = max(need, 1)
    return need


def war_states(prod, cons):
    need = 0
    if prod.cls == "mfma" and cons.cls in VALU_LIKE:
        c = regs_of(prod.ops[3])
        if c & cons.wr:
            need = max(need, 7 if is_512_mfma(prod) else 3)
    if prod.cls == "vmem" and "store" in prod.mn and ("x4" in prod.mn or "x3" in prod.mn):
        if cons.cls in VALU_LIKE and (prod.rd & cons.wr):
            need = max(need, 2)
    return need


class Kern:
    def __init__(self, name):
        self.name = name
        self.items = []
        self.vm_issued = 0
        self.lg_issued = 0
        self.uid = 0

    def e(self, text):
        i = Inst(text)
        self.items.append(i)
        if i.cls == "vmem":
            self.vm_issued += 1
        if i.cls == "lds":
            self.lg_issued += 1
        return self.vm_issued if i.cls == "vmem" else self.lg_issued

    def label(self, name):
        self.items.append(("label", name))

    def comment(self, text):
        self.items.append(("raw", "    ; " + text))

    def newlabel(self, base):
        self.uid += 1
        return f"L_{self.name}_{base}_{self.uid}"

    def wait_vm(self, idx):
        n = self.vm_issued - idx
        assert n >= 0
        if n > 63:
            n = 63
        self.e(f"s_waitcnt vmcnt({n})")

    def wait_lg(self, idx):
        n = self.lg_issued - idx
        assert n >= 0
        if n > 15:
            n = 15
        self.e(f"s_waitcnt lgkmcnt({n})")

    def finish(self):
        out = []
        window = []
        for it in self.items:
            if isinstance(it, tuple):
                if it[0] == "label":
                    out.append(f"{it[1]}:")
                    window = window
                else:
                    out.append(it[1])
                continue
            need = 0
            dist = 0
            for prev in reversed(window):
                n = max(need_states(prev, it), war_states(prev, it))
                if n > dist:
                    need = max(need, n - dist)
                dist += prev.states
                if dist > 24:
                    break
            while need > 0:
                k = min(need, 16)
                nop = Inst(f"s_nop {k - 1}")
                out.append("    " + nop.text)
                window.append(nop)
                need -= k
            out.append("    " + it.text)
            window.append(it)
            if len(window) > 40:
                window = window[-40:]
        return "\n".join(out) + "\n"


def kernel_text(kern, nvgpr=256, nsgpr=102, accum=256):
    name = kern.name
    body = kern.finish()
    txt = f""".globl {name}
.p2align 8
.type {name},@function
{name}:
{body}"""
    desc = f""".p2align 6
.amdhsa_kernel {name}
  .amdhsa_next_free_vgpr {nvgpr}
  .amdhsa_next_free_sgpr {nsgpr}
  .amdhsa_accum_offset {accum}
  .amdhsa_group_segment_fixed_size 0
  .amdhsa_kernarg_size 88
  .amdhsa_user_sgpr_count 2
  .amdhsa_user_sgpr_kernarg_segment_ptr 1
  .amdhsa_system_sgpr_workgroup_id_x 1
.end_amdhsa_kernel
"""
    return txt, desc
```

```python
import sys, json
sys.path.insert(0, "gen")
from asmlib import Kern, kernel_text, f32hex

NAME = "interleave_layers__sliding_local_dilated__mixer_s_mlp__prompt"
S, D, F = 2048, 448, 1792

ARG = dict(A_x=0, A_wqkv=8, A_wo=16, B_x=24, B_w1=32, B_w2=40, B_w3=48, B_w4=56, out=64, dbg=72, ws=80)
WS_BYTES = 268435456

class WS:
    pass

_off = [0]
def ws_alloc(nbytes):
    o = _off[0]
    _off[0] = (o + nbytes + 4095) // 4096 * 4096
    return o

WS.WP_QKV = ws_alloc(96 * 14 * 1024)
WS.WP_WO = ws_alloc(28 * 14 * 1024)
WS.WP_W1 = ws_alloc(28 * 14 * 1024)
WS.WP_W2 = ws_alloc(28 * 14 * 1024)
WS.WP_W3 = ws_alloc(112 * 14 * 1024)
WS.WP_W4 = ws_alloc(28 * 56 * 1024)
for L in (0, 1):
    setattr(WS, f"QKV{L}", ws_alloc(S * 1536 * 2))
    for n in ("O", "XA", "Y", "H", "X1", "XB"):
        setattr(WS, f"{n}{L}", ws_alloc(S * D * 2))
    setattr(WS, f"G{L}", ws_alloc(S * F * 2))

def magic_div(d, maxn):
    for sh in range(0, 8):
        m = ((1 << (32 + sh)) + d - 1) // d
        if m >= (1 << 32):
            continue
        ok = all(((n * m) >> (32 + sh)) == n // d for n in range(maxn))
        if ok:
            return m, sh
    raise ValueError


def s_divmod(k, sq, sr, sn, d, maxn, stmp):
    m, sh = magic_div(d, maxn)
    k.e(f"s_mul_hi_u32 {sq}, {sn}, 0x{m:x}")
    if sh:
        k.e(f"s_lshr_b32 {sq}, {sq}, {sh}")
    k.e(f"s_mul_i32 {stmp}, {sq}, {d}")
    k.e(f"s_sub_u32 {sr}, {sn}, {stmp}")


def load_srd(k, sdst, argoff, nbytes, add=0, stmp=None):
    raise NotImplementedError


def make_srd_from(k, sdst, sptr, nbytes, add=0):
    if add:
        k.e(f"s_add_u32 s{sdst}, s{sptr}, 0x{add:x}")
        k.e(f"s_addc_u32 s{sdst+1}, s{sptr+1}, 0")
    else:
        k.e(f"s_mov_b32 s{sdst}, s{sptr}")
        k.e(f"s_mov_b32 s{sdst+1}, s{sptr+1}")
    k.e(f"s_and_b32 s{sdst+1}, s{sdst+1}, 0xffff")
    k.e(f"s_mov_b32 s{sdst+2}, 0x{nbytes:x}")
    k.e(f"s_mov_b32 s{sdst+3}, 0x00020000")


PREP_MATS = [
    ("A_wqkv", 448, 1344, WS.WP_QKV, 96, "qkv"),
    ("A_wo", 448, 448, WS.WP_WO, 28, "plain"),
    ("B_w1", 448, 448, WS.WP_W1, 28, "plain"),
    ("B_w2", 448, 448, WS.WP_W2, 28, "plain"),
    ("B_w3", 448, 1792, WS.WP_W3, 112, "plain"),
    ("B_w4", 1792, 448, WS.WP_W4, 28, "plain"),
]
PREP_NBLK = sum(nt * (K // 32) for (_, K, N, _, nt, _) in PREP_MATS)


def gen_prep():
    k = Kern("prep_kernel")
    k.e("v_lshrrev_b32 v1, 6, v0")
    k.e("s_nop 0")
    k.e("v_readfirstlane_b32 s3, v1")
    k.e("s_lshl_b32 s4, s2, 2")
    k.e("s_add_u32 s4, s4, s3")
    k.e(f"s_cmp_ge_u32 s4, {PREP_NBLK}")
    k.e("s_cbranch_scc1 L_prep_done")
    k.e("s_load_dwordx4 s[8:11], s[0:1], 0")
    k.e("s_load_dwordx4 s[12:15], s[0:1], 16")
    k.e("s_load_dwordx4 s[16:19], s[0:1], 32")
    k.e("s_load_dwordx4 s[20:23], s[0:1], 48")
    k.e(f"s_load_dwordx2 s[24:25], s[0:1], {ARG['ws']}")
    k.e("v_and_b32 v2, 63, v0")
    k.e("v_lshrrev_b32 v3, 4, v2")
    k.e("v_and_b32 v4, 15, v2")
    k.e("v_lshlrev_b32 v5, 4, v2")
    k.e("s_waitcnt lgkmcnt(0)")
    make_srd_from(k, 28, 24, WS_BYTES)
    ptr = {"A_wqkv": 10, "A_wo": 12, "B_w1": 16, "B_w2": 18, "B_w3": 20, "B_w4": 22}
    base = 0
    for (arg, K, N, wsoff, ntiles, kind) in PREP_MATS:
        nb = ntiles * (K // 32)
        KS = K // 32
        lab_next = f"L_prep_n_{arg}"
        k.e(f"s_cmp_ge_u32 s4, {base + nb}")
        k.e(f"s_cbranch_scc1 {lab_next}")
        k.e(f"s_sub_u32 s5, s4, {base}")
        s_divmod(k, "s6", "s7", "s5", KS, nb, "s32")
        if kind == "plain":
            k.e("s_lshl_b32 s33, s6, 4")
        else:
            s_divmod(k, "s34", "s35", "s6", 12, 96, "s32")
            k.e("s_lshr_b32 s36, s35, 2")
            k.e("s_and_b32 s37, s35, 3")
            k.e("s_mul_i32 s33, s36, 448")
            k.e("s_mul_i32 s32, s34, 56")
            k.e("s_add_u32 s33, s33, s32")
            k.e("s_lshl_b32 s32, s37, 4")
            k.e("s_add_u32 s33, s33, s32")
        make_srd_from(k, 40, ptr[arg], K * N * 2)
        k.e(f"s_mul_i32 s44, s7, {32 * N}")
        k.e("s_add_u32 s44, s44, s33")
        k.e("s_lshl_b32 s44, s44, 1")
        k.e(f"s_movk_i32 s45, {8 * N}")
        k.e("v_mul_lo_u32 v6, v3, s45")
        k.e("v_add_lshl_u32 v6, v6, v4, 1")
        for j in range(8):
            k.e(f"s_add_u32 s46, s44, {j * N * 2}")
            k.e(f"buffer_load_ushort v{16 + j}, v6, s[40:43], s46 offen")
        k.e(f"s_lshl_b32 s47, s5, 10")
        k.e(f"s_add_u32 s47, s47, 0x{wsoff:x}")
        k.e("s_waitcnt vmcnt(0)")
        for j in range(4):
            k.e(f"v_lshl_or_b32 v{8 + j}, v{17 + 2 * j}, 16, v{16 + 2 * j}")
        k.e("buffer_store_dwordx4 v[8:11], v5, s[28:31], s47 offen")
        k.e("s_endpgm")
        k.label(lab_next)
        base += nb
    k.label("L_prep_done")
    k.e("s_endpgm")
    grid = (PREP_NBLK + 3) // 4
    return k, dict(grid=grid, block=256, lds=0, nvgpr=24, nsgpr=48)


INV448 = f32hex(1.0 / 448.0)
EPS = f32hex(1e-5)
GELU_C1 = f32hex(-2.0 * 0.7978845608028654 * 1.4426950408889634)
GELU_K = f32hex(0.044715)

class VAlloc:
    def __init__(self, start=1, limit=256):
        self.n = start
        self.limit = limit
    def get(self, cnt=1, align=1):
        self.n = (self.n + align - 1) // align * align
        b = self.n
        self.n += cnt
        assert self.n <= self.limit, f"out of VGPRs {self.n}"
        return b


def emit_bf16_round(k, dst_f32, src_f32, tmp):
    k.e(f"v_cvt_pk_bf16_f32 v{tmp}, v{src_f32}, v{src_f32}")
    k.e(f"v_lshlrev_b32 v{dst_f32}, 16, v{tmp}")


def emit_row_reduce(k, vsum, vt, lpr):
    k.e(f"v_add_f32_dpp v{vt}, v{vsum}, v{vsum} quad_perm:[1,0,3,2] row_mask:0xf bank_mask:0xf")
    k.e(f"v_add_f32_dpp v{vsum}, v{vt}, v{vt} quad_perm:[2,3,0,1] row_mask:0xf bank_mask:0xf")
    k.e(f"v_add_f32_dpp v{vt}, v{vsum}, v{vsum} row_half_mirror row_mask:0xf bank_mask:0xf")
    if lpr == 16:
        k.e(f"v_add_f32_dpp v{vsum}, v{vt}, v{vt} row_mirror row_mask:0xf bank_mask:0xf")
    else:
        k.e(f"v_mov_b32 v{vsum}, v{vt}")


def emit_ln(k, X, nd, lpr, T):
    a0, a1, a2, a3, t0, mf, dl, lo, hi, s2a, s2b, rv = [T + i for i in range(12)]
    for i, r in enumerate((a0, a1, a2, a3)):
        k.e(f"v_mov_b32 v{r}, 0")
    for d in range(nd):
        acc = (a0, a1, a2, a3)[d % 4]
        k.e(f"v_dot2_f32_bf16 v{acc}, v{X + d}, s28, v{acc}")
    k.e(f"v_add_f32 v{a0}, v{a0}, v{a1}")
    k.e(f"v_add_f32 v{a2}, v{a2}, v{a3}")
    k.e(f"v_add_f32 v{a0}, v{a0}, v{a2}")
    emit_row_reduce(k, a0, t0, lpr)
    k.e(f"v_mul_f32 v{a0}, {INV448}, v{a0}")
    emit_bf16_round(k, mf, a0, t0)
    k.e(f"v_sub_f32 v{dl}, v{a0}, v{mf}")
    k.e(f"v_mov_b32 v{s2a}, 0")
    k.e(f"v_mov_b32 v{s2b}, 0")
    for d in range(nd):
        k.e(f"v_lshlrev_b32 v{lo}, 16, v{X + d}")
        k.e(f"v_and_b32 v{hi}, 0xffff0000, v{X + d}")
        k.e(f"v_sub_f32 v{lo}, v{lo}, v{mf}")
        k.e(f"v_sub_f32 v{hi}, v{hi}, v{mf}")
        k.e(f"v_fmac_f32 v{s2a}, v{lo}, v{lo}")
        k.e(f"v_fmac_f32 v{s2b}, v{hi}, v{hi}")
        k.e(f"v_cvt_pk_bf16_f32 v{X + d}, v{lo}, v{hi}")
    k.e(f"v_add_f32 v{s2a}, v{s2a}, v{s2b}")
    emit_row_reduce(k, s2a, t0, lpr)
    k.e(f"v_mul_f32 v{s2a}, {INV448}, v{s2a}")
    k.e(f"v_fma_f32 v{s2a}, -v{dl}, v{dl}, v{s2a}")
    emit_bf16_round(k, s2a, s2a, t0)
    k.e(f"v_add_f32 v{s2a}, {EPS}, v{s2a}")
    emit_bf16_round(k, s2a, s2a, t0)
    k.e(f"v_sqrt_f32 v{s2a}, v{s2a}")
    emit_bf16_round(k, s2a, s2a, t0)
    k.e(f"v_rcp_f32 v{rv}, v{s2a}")
    k.e(f"v_fma_f32 v{t0}, -v{s2a}, v{rv}, 2.0")
    k.e(f"v_mul_f32 v{rv}, v{rv}, v{t0}")
    for d in range(nd):
        k.e(f"v_lshlrev_b32 v{lo}, 16, v{X + d}")
        k.e(f"v_and_b32 v{hi}, 0xffff0000, v{X + d}")
        k.e(f"v_mul_f32 v{lo}, v{lo}, v{rv}")
        k.e(f"v_mul_f32 v{hi}, v{hi}, v{rv}")
        k.e(f"v_cvt_pk_bf16_f32 v{X + d}, v{lo}, v{hi}")


def emit_gelu_pair(k, pk, T):
    x0, x1, t0, t1 = T, T + 1, T + 2, T + 3
    k.e(f"v_lshlrev_b32 v{x0}, 16, v{pk}")
    k.e(f"v_and_b32 v{x1}, 0xffff0000, v{pk}")
    for (x, t) in ((x0, t0), (x1, t1)):
        k.e(f"v_mul_f32 v{t}, v{x}, v{x}")
    for (x, t) in ((x0, t0), (x1, t1)):
        k.e(f"v_fma_f32 v{t}, v{t}, s29, 1.0")
    for (x, t) in ((x0, t0), (x1, t1)):
        k.e(f"v_mul_f32 v{t}, v{t}, v{x}")
    for (x, t) in ((x0, t0), (x1, t1)):
        k.e(f"v_mul_f32 v{t}, s30, v{t}")
    for (x, t) in ((x0, t0), (x1, t1)):
        k.e(f"v_exp_f32 v{t}, v{t}")
    for (x, t) in ((x0, t0), (x1, t1)):
        k.e(f"v_add_f32 v{t}, 1.0, v{t}")
    for (x, t) in ((x0, t0), (x1, t1)):
        k.e(f"v_rcp_f32 v{t}, v{t}")
    for (x, t) in ((x0, t0), (x1, t1)):
        k.e(f"v_mul_f32 v{x}, v{x}, v{t}")
    k.e(f"v_cvt_pk_bf16_f32 v{pk}, v{x0}, v{x1}")


def gen_gemm(name, cfg):
    K = cfg["K"]; KS = K // 32; TM = cfg["TM"]; NCB = cfg["NCB"]
    NRB = S // TM
    P = K * 2 + 32
    LPR = 512 // TM
    RPW = 64 // LPR
    k = Kern(name)
    nwg = NRB * NCB
    done = f"L_{name}_done"
    k.e(f"s_cmp_ge_u32 s2, {nwg}")
    k.e(f"s_cbranch_scc1 {done}")
    k.e("s_load_dwordx4 s[32:35], s[0:1], 0")
    k.e(f"s_load_dwordx4 s[36:39], s[0:1], {ARG['out']}")
    k.e(f"s_load_dwordx2 s[40:41], s[0:1], {ARG['ws']}")
    va = VAlloc(1)
    v_lane = va.get(); v_m = va.get(); v_g = va.get(); v_t0 = va.get(); v_t1 = va.get()
    k.e(f"v_lshrrev_b32 v{v_t0}, 6, v0")
    k.e(f"v_and_b32 v{v_lane}, 63, v0")
    k.e(f"v_readfirstlane_b32 s3, v{v_t0}")
    s_divmod(k, "s4", "s5", "s2", NCB, nwg, "s42")
    k.e(f"s_mul_i32 s6, s4, {TM}")
    k.e(f"v_and_b32 v{v_m}, 15, v{v_lane}")
    k.e(f"v_lshrrev_b32 v{v_g}, 4, v{v_lane}")
    k.e("s_mov_b32 s28, 0x3f803f80")
    k.e(f"s_mov_b32 s29, {GELU_K}")
    k.e(f"s_mov_b32 s30, {GELU_C1}")
    k.e("s_waitcnt lgkmcnt(0)")

    def srd(sdst, spec):
        slot, wsoff, pitch, nbytes = spec
        if slot == "A_x":
            make_srd_from(k, sdst, 32, nbytes)
        elif slot == "out":
            make_srd_from(k, sdst, 36, nbytes)
        else:
            make_srd_from(k, sdst, 40, nbytes, add=wsoff)
    make_srd_from(k, 8, 40, WS_BYTES)
    srd(12, cfg["src"])
    srd(16, cfg["dst"])
    if cfg.get("res1"):
        srd(20, cfg["res1"])
    if cfg.get("res2"):
        srd(24, cfg["res2"])
    if cfg.get("ystore") is not None:
        make_srd_from(k, 44, 40, S * D * 2, add=cfg["ystore"])

    src_pitch = cfg["src"][2]
    pro = cfg["pro"]
    if pro in ("ln", "ln2", "shift"):
        PB = 128 // LPR
    else:
        PB = 16 if (K * 2) % (LPR * 16) == 0 else 8
    chunk = LPR * PB
    ninstr = (K * 2) // chunk
    dwp = PB // 4
    nd = ninstr * dwp
    X = va.get(nd, 4)
    v_r = va.get(); v_c = va.get(); v_soff = va.get(); v_lw = va.get()
    lg = {8: 3, 16: 4}[LPR]
    k.e(f"v_lshrrev_b32 v{v_r}, {lg}, v{v_lane}")
    k.e(f"v_and_b32 v{v_c}, {LPR - 1}, v{v_lane}")
    k.e(f"s_mul_i32 s42, s3, {RPW}")
    k.e(f"v_add_u32 v{v_r}, s42, v{v_r}")
    k.e(f"v_mul_u32_u24 v{v_lw}, {P}, v{v_r}")
    k.e(f"v_lshl_add_u32 v{v_lw}, v{v_c}, {PB.bit_length() - 1}, v{v_lw}")
    k.e(f"v_add_u32 v{v_soff}, s6, v{v_r}")
    k.e(f"s_movk_i32 s42, {src_pitch}")
    k.e(f"v_mul_lo_u32 v{v_soff}, v{v_soff}, s42")
    k.e(f"v_lshl_add_u32 v{v_soff}, v{v_c}, {PB.bit_length() - 1}, v{v_soff}")
    ldmn = {8: "buffer_load_dwordx2", 16: "buffer_load_dwordx4"}[PB]
    src_idx = []
    if pro == "shift":
        shifts = [1, -1, 2, -2]
        v_sh = va.get()
        for i in range(ninstr):
            b0 = i * chunk
            q0 = b0 // 224
            q1 = (b0 + chunk - 1) // 224
            d0 = (-shifts[q0] * src_pitch + b0) & 0xffffffff
            if q0 == q1:
                k.e(f"v_add_u32 v{v_sh}, 0x{d0:x}, v{v_soff}")
            else:
                d1 = (-shifts[q1] * src_pitch + b0) & 0xffffffff
                cb_ = ((q1 * 224) - b0) // PB
                k.e(f"v_cmp_gt_u32 vcc, {cb_}, v{v_c}")
                k.e(f"v_mov_b32 v{v_t0}, 0x{d1:x}")
                k.e(f"v_mov_b32 v{v_t1}, 0x{d0:x}")
                k.e(f"v_cndmask_b32 v{v_sh}, v{v_t0}, v{v_t1}, vcc")
                k.e(f"v_add_u32 v{v_sh}, v{v_sh}, v{v_soff}")
            src_idx.append(k.e(f"{ldmn} v[{X + i * dwp}:{X + i * dwp + dwp - 1}], v{v_sh}, s[12:15], 0 offen"))
    else:
        for i in range(ninstr):
            src_idx.append(k.e(f"{ldmn} v[{X + i * dwp}:{X + i * dwp + dwp - 1}], v{v_soff}, s[12:15], 0 offen offset:{i * chunk}"))

    waves = cfg["waves"]
    variants = {}
    for w, spec in enumerate(waves):
        key = None if spec is None else (spec["b"], spec["m0"], spec["a"])
        variants.setdefault(key, []).append(w)

    maxb = max(spec["b"] for spec in waves if spec)
    depth = cfg.get("depth", KS)
    WF = va.get(maxb * depth * 4, 4)
    v_w = va.get()
    k.e(f"v_lshlrev_b32 v{v_w}, 4, v{v_lane}")
    k.e("s_mov_b32 s43, 0")
    firsts = [spec["t0"] if spec else 0 for spec in waves]
    for w in range(8):
        if firsts[w]:
            k.e(f"s_cmp_eq_u32 s3, {w}")
            k.e(f"s_cselect_b32 s43, {firsts[w]}, s43")
    k.e(f"s_mul_i32 s48, s5, {cfg['tiles_per_cb']}")
    k.e("s_add_u32 s48, s48, s43")
    k.e(f"s_mul_i32 s48, s48, {KS * 1024}")
    k.e(f"s_add_u32 s48, s48, 0x{cfg['wp_off']:x}")

    w_idx = {}
    def issue_w(j, s):
        slot = s % depth
        r = WF + (j * depth + slot) * 4
        off = (j * KS + s) * 1024
        hi_off = off & ~4095
        lo_off = off & 4095
        if hi_off:
            k.e(f"s_add_u32 s49, s48, 0x{hi_off:x}")
            sreg = "s49"
        else:
            sreg = "s48"
        w_idx[(j, s)] = k.e(f"buffer_load_dwordx4 v[{r}:{r + 3}], v{v_w}, s[8:11], {sreg} offen offset:{lo_off}")

    for s in range(min(depth, KS)):
        for j in range(maxb):
            issue_w(j, s)

    k.wait_vm(src_idx[-1])
    T = va.get(12)
    if pro in ("ln", "ln2"):
        emit_ln(k, X, nd, LPR, T)
    if pro == "ln2":
        if cfg.get("ystore") is not None:
            lab = k.newlabel("noy")
            k.e("s_cmp_lg_u32 s5, 0")
            k.e(f"s_cbranch_scc1 {lab}")
            stmn = {8: "buffer_store_dwordx2", 16: "buffer_store_dwordx4"}[PB]
            for i in range(ninstr):
                k.e(f"{stmn} v[{X + i * dwp}:{X + i * dwp + dwp - 1}], v{v_soff}, s[44:47], 0 offen offset:{i * chunk}")
            k.label(lab)
            k.e("s_nop 1")
        emit_ln(k, X, nd, LPR, T)
    wrmn = {8: "ds_write_b64", 16: "ds_write_b128"}[PB]
    for i in range(ninstr):
        k.e(f"{wrmn} v{v_lw}, v[{X + i * dwp}:{X + i * dwp + dwp - 1}] offset:{i * chunk}")
    k.e("s_waitcnt lgkmcnt(0)")
    k.e("s_barrier")

    dst_pitch = cfg["dst"][2]
    v_x = va.get()
    k.e(f"v_mul_u32_u24 v{v_x}, {P}, v{v_m}")
    k.e(f"v_lshl_add_u32 v{v_x}, v{v_g}, 4, v{v_x}")
    v_eo = va.get()
    k.e(f"s_movk_i32 s42, {dst_pitch}")
    k.e(f"v_mul_lo_u32 v{v_eo}, v{v_m}, s42")
    k.e(f"v_lshl_add_u32 v{v_eo}, v{v_g}, 3, v{v_eo}")

    vbase_after_common = va.n
    endlab = f"L_{name}_end"
    vlist = [(key, ws_) for key, ws_ in variants.items() if key is not None]
    for vi, (key, ws_) in enumerate(vlist):
        pass
    labs = {key: k.newlabel("var") for key, _ in vlist}
    for key, ws_ in vlist:
        for w in ws_:
            k.e(f"s_cmp_eq_u32 s3, {w}")
            k.e(f"s_cbranch_scc1 {labs[key]}")
    k.e(f"s_branch {endlab}")
    maxv = va.n
    for key, ws_ in vlist:
        b, m0, a = key
        va2 = VAlloc(vbase_after_common)
        k.label(labs[key])
        k.e("s_nop 4")
        ACC = va2.get(a * b * 4, 4)
        XF = va2.get(2 * a * 4, 4)
        for r in range(a * b * 4):
            k.e(f"v_mov_b32 v{ACC + r}, 0")
        RES = None
        nres = {"store": 0, "gelu": 0, "res1": 1, "res2": 2}[cfg["epi"]]
        if nres:
            RES = va2.get(a * b * 2 * nres, 2)
        k.e(f"s_mul_i32 s50, s6, {dst_pitch}")
        k.e(f"s_mul_i32 s51, s5, {cfg['TNcols'] * 2}")
        k.e("s_add_u32 s50, s50, s51")
        k.e(f"s_lshl_b32 s51, s43, 5")
        k.e("s_add_u32 s50, s50, s51")
        res_idx = []
        def tile_soff(i):
            o = (m0 + i) * 16 * dst_pitch
            if o == 0:
                return "s50"
            k.e(f"s_add_u32 s52, s50, {o}")
            return "s52"
        if nres:
            for i in range(a):
                sr = tile_soff(i)
                for j in range(b):
                    for q in range(nres):
                        r = RES + ((i * b + j) * nres + q) * 2
                        srdn = (20, 24)[q]
                        res_idx.append(k.e(f"buffer_load_dwordx2 v[{r}:{r + 1}], v{v_eo}, s[{srdn}:{srdn + 3}], {sr} offen offset:{j * 32}"))

        def issue_x(s):
            buf = s % 2
            idx = None
            for i in range(a):
                r = XF + (buf * a + i) * 4
                idx = k.e(f"ds_read_b128 v[{r}:{r + 3}], v{v_x} offset:{(m0 + i) * 16 * P + 64 * s}")
            return idx
        xi = issue_x(0)
        for s in range(KS):
            nxt = issue_x(s + 1) if s + 1 < KS else None
            k.wait_lg(xi)
            for j in range(b):
                if (j, s) in w_idx:
                    k.wait_vm(w_idx[(j, s)])
            buf = s % 2
            for j in range(b):
                wr = WF + (j * depth + (s % depth)) * 4
                for i in range(a):
                    xr = XF + (buf * a + i) * 4
                    ar = ACC + (i * b + j) * 4
                    k.e(f"v_mfma_f32_16x16x32_bf16 v[{ar}:{ar + 3}], v[{wr}:{wr + 3}], v[{xr}:{xr + 3}], v[{ar}:{ar + 3}]")
            if s + depth < KS:
                for j in range(b):
                    issue_w(j, s + depth)
            xi = nxt
        TE = va2.get(8)
        if res_idx:
            k.wait_vm(res_idx[-1])
        for i in range(a):
            sr = tile_soff(i)
            for j in range(b):
                ar = ACC + (i * b + j) * 4
                p0, p1 = TE, TE + 1
                k.e(f"v_cvt_pk_bf16_f32 v{p0}, v{ar}, v{ar + 1}")
                k.e(f"v_cvt_pk_bf16_f32 v{p1}, v{ar + 2}, v{ar + 3}")
                if cfg["epi"] == "gelu":
                    emit_gelu_pair(k, p0, TE + 2)
                    emit_gelu_pair(k, p1, TE + 2)
                elif nres:
                    for q in range(nres):
                        r = RES + ((i * b + j) * nres + q) * 2
                        for hq, pk in enumerate((p0, p1)):
                            lo, hi, rl, rh = TE + 2, TE + 3, TE + 4, TE + 5
                            k.e(f"v_lshlrev_b32 v{lo}, 16, v{pk}")
                            k.e(f"v_and_b32 v{hi}, 0xffff0000, v{pk}")
                            k.e(f"v_lshlrev_b32 v{rl}, 16, v{r + hq}")
                            k.e(f"v_and_b32 v{rh}, 0xffff0000, v{r + hq}")
                            k.e(f"v_add_f32 v{lo}, v{lo}, v{rl}")
                            k.e(f"v_add_f32 v{hi}, v{hi}, v{rh}")
                            k.e(f"v_cvt_pk_bf16_f32 v{pk}, v{lo}, v{hi}")
                k.e(f"buffer_store_dwordx2 v[{p0}:{p1}], v{v_eo}, s[16:19], {sr} offen offset:{j * 32}")
        k.e(f"s_branch {endlab}")
        maxv = max(maxv, va2.n)
    k.label(endlab)
    k.label(done)
    k.e("s_endpgm")
    lds = TM * P
    return k, dict(grid=nwg, block=512, lds=lds, nvgpr=maxv, nsgpr=64)


def waves_even(ntiles, a, m0=0):
    base = ntiles // 8
    extra = ntiles % 8
    counts = [base + (1 if w < extra else 0) for w in range(8)]
    out = []
    t = 0
    for w in range(8):
        if counts[w] == 0:
            out.append(None)
        else:
            out.append(dict(b=counts[w], t0=t, m0=m0, a=a))
        t += counts[w]
    return out


def phase_cfgs(L):
    xin = ("A_x", 0, D * 2, S * D * 2) if L == 0 else (None, WS.XB0, D * 2, S * D * 2)
    g = lambda n: getattr(WS, f"{n}{L}")
    buf = lambda n, cols=D: (None, g(n), cols * 2, S * cols * 2)
    cfgs = []
    cfgs.append(("qkv", dict(K=448, TM=64, NCB=8, tiles_per_cb=12, wp_off=WS.WP_QKV, waves=waves_even(12, 4),
                             pro="ln", src=xin, epi="store", dst=(None, g("QKV"), 1536 * 2, S * 1536 * 2), TNcols=192)))
    cfgs.append(("wo", dict(K=448, TM=32, NCB=4, tiles_per_cb=7, wp_off=WS.WP_WO, waves=waves_even(7, 2),
                            pro="plain", src=buf("O"), epi="res1", res1=xin, dst=buf("XA"), TNcols=112)))
    cfgs.append(("w1", dict(K=448, TM=32, NCB=4, tiles_per_cb=7, wp_off=WS.WP_W1, waves=waves_even(7, 2),
                            pro="ln2", src=buf("XA"), ystore=g("Y"), epi="gelu", dst=buf("H"), TNcols=112)))
    cfgs.append(("w2", dict(K=448, TM=32, NCB=4, tiles_per_cb=7, wp_off=WS.WP_W2, waves=waves_even(7, 2),
                            pro="shift", src=buf("H"), epi="res1", res1=buf("Y"), dst=buf("X1"), TNcols=112)))
    cfgs.append(("w3", dict(K=448, TM=64, NCB=7, tiles_per_cb=16, wp_off=WS.WP_W3, waves=waves_even(16, 4),
                            pro="ln", src=buf("X1"), epi="gelu", dst=buf("G", F), TNcols=256)))
    dst6 = buf("XB") if L == 0 else ("out", 0, D * 2, S * D * 2)
    cfgs.append(("w4", dict(K=1792, TM=32, NCB=4, tiles_per_cb=7, wp_off=WS.WP_W4, waves=waves_even(7, 2),
                            pro="plain", src=buf("G", F), epi="res2", res1=buf("X1"), res2=buf("XA"), dst=dst6,
                            TNcols=112, depth=16)))
    return cfgs


PQ = 392
SCALE = f32hex(28 ** -0.5)
LOG2E = f32hex(1.4426950408889634)


def emit_attention(k, va, lds_base, s_row0, s_hg, srd_out, sreg_tmp):
    v_u = va.get(); v_hh = va.get(); v_t = va.get(); v_aq = va.get(); v_ak = va.get(); v_av = va.get()
    t0 = va.get(); t1 = va.get(); t2 = va.get(); t3 = va.get()
    Q = va.get(14, 2); K0 = va.get(14, 2); K1 = va.get(14, 2)
    k.e(f"v_and_b32 v{v_u}, 3, v0")
    k.e(f"v_bfe_u32 v{v_hh}, v0, 2, 1")
    k.e(f"v_lshrrev_b32 v{v_t}, 3, v0")
    k.e(f"v_mul_u32_u24 v{v_aq}, {PQ}, v{v_t}")
    k.e(f"v_mul_u32_u24 v{t0}, 56, v{v_hh}")
    k.e(f"v_add_u32 v{v_aq}, v{v_aq}, v{t0}")
    k.e(f"v_add_u32 v{v_aq}, {lds_base + 16 * PQ}, v{v_aq}")
    k.e(f"v_mul_u32_u24 v{t0}, {4 * PQ}, v{v_u}")
    k.e(f"v_sub_u32 v{v_ak}, v{v_aq}, v{t0}")
    k.e(f"v_add_u32 v{v_ak}, 0x{(128 - 2 * PQ) & 0xffffffff:x}, v{v_ak}")
    k.e(f"v_lshlrev_b32 v{t0}, 4, v{v_u}")
    k.e(f"v_add_u32 v{v_av}, v{v_aq}, v{t0}")
    k.e(f"v_add_u32 v{v_av}, 0x{(256 - 14 * PQ) & 0xffffffff:x}, v{v_av}")
    for i in range(7):
        k.e(f"ds_read_b64 v[{Q + 2 * i}:{Q + 2 * i + 1}], v{v_aq} offset:{8 * i}")
    for i in range(7):
        k.e(f"ds_read_b64 v[{K0 + 2 * i}:{K0 + 2 * i + 1}], v{v_ak} offset:{2 * PQ + 8 * i}")
    for i in range(7):
        k.e(f"ds_read_b64 v[{K1 + 2 * i}:{K1 + 2 * i + 1}], v{v_ak} offset:{8 * i}")
    V = va.get(32, 2)
    for j in range(8):
        for h2 in range(2):
            k.e(f"ds_read_b64 v[{V + 4 * j + 2 * h2}:{V + 4 * j + 2 * h2 + 1}], v{v_av} offset:{(14 - 2 * j) * PQ + 8 * h2}")
    l0 = va.get(); l1 = va.get()
    k.e(f"v_mov_b32 v{l0}, 0")
    k.e(f"v_mov_b32 v{l1}, 0")
    k.e("s_waitcnt lgkmcnt(0)")
    for i in range(14):
        k.e(f"v_dot2_f32_bf16 v{l0}, v{Q + i}, v{K0 + i}, v{l0}")
        k.e(f"v_dot2_f32_bf16 v{l1}, v{Q + i}, v{K1 + i}, v{l1}")
    k.e(f"v_cvt_pk_bf16_f32 v{t0}, v{l0}, v{l1}")
    k.e(f"v_lshlrev_b32 v{l0}, 16, v{t0}")
    k.e(f"v_and_b32 v{l1}, 0xffff0000, v{t0}")
    k.e(f"v_mul_f32 v{l0}, {SCALE}, v{l0}")
    k.e(f"v_mul_f32 v{l1}, {SCALE}, v{l1}")
    k.e(f"v_cvt_pk_bf16_f32 v{t0}, v{l0}, v{l1}")
    k.e(f"v_lshlrev_b32 v{l0}, 16, v{t0}")
    k.e(f"v_and_b32 v{l1}, 0xffff0000, v{t0}")
    k.e(f"v_add_u32 v{t1}, {s_row0}, v{v_t}")
    k.e(f"v_lshlrev_b32 v{t2}, 2, v{v_u}")
    k.e(f"v_sub_u32 v{t1}, v{t1}, v{t2}")
    k.e(f"v_mov_b32 v{t3}, 0xce6e6b28")
    k.e(f"v_cmp_gt_i32 vcc, 0, v{t1}")
    k.e(f"v_cndmask_b32 v{l0}, v{l0}, v{t3}, vcc")
    k.e(f"v_cmp_gt_i32 vcc, 2, v{t1}")
    k.e(f"v_cndmask_b32 v{l1}, v{l1}, v{t3}, vcc")
    k.e(f"v_max_f32 v{t0}, v{l0}, v{l1}")
    k.e(f"v_max_f32_dpp v{t1}, v{t0}, v{t0} quad_perm:[1,0,3,2] row_mask:0xf bank_mask:0xf")
    k.e(f"v_max_f32_dpp v{t0}, v{t1}, v{t1} quad_perm:[2,3,0,1] row_mask:0xf bank_mask:0xf")
    k.e(f"v_sub_f32 v{l0}, v{l0}, v{t0}")
    k.e(f"v_sub_f32 v{l1}, v{l1}, v{t0}")
    k.e(f"v_mul_f32 v{l0}, {LOG2E}, v{l0}")
    k.e(f"v_mul_f32 v{l1}, {LOG2E}, v{l1}")
    k.e(f"v_exp_f32 v{l0}, v{l0}")
    k.e(f"v_exp_f32 v{l1}, v{l1}")
    k.e(f"v_add_f32 v{t0}, v{l0}, v{l1}")
    k.e(f"v_add_f32_dpp v{t1}, v{t0}, v{t0} quad_perm:[1,0,3,2] row_mask:0xf bank_mask:0xf")
    k.e(f"v_add_f32_dpp v{t0}, v{t1}, v{t1} quad_perm:[2,3,0,1] row_mask:0xf bank_mask:0xf")
    k.e(f"v_rcp_f32 v{t0}, v{t0}")
    k.e(f"v_mul_f32 v{l0}, v{l0}, v{t0}")
    k.e(f"v_mul_f32 v{l1}, v{l1}, v{t0}")
    k.e(f"v_cvt_pk_bf16_f32 v{t0}, v{l0}, v{l1}")
    PP = va.get(4)
    for uu in range(4):
        k.e(f"v_mov_b32_dpp v{PP + uu}, v{t0} quad_perm:[{uu},{uu},{uu},{uu}] row_mask:0xf bank_mask:0xf")
    OA = va.get(8)
    for d in range(8):
        k.e(f"v_mov_b32 v{OA + d}, 0")
    k.e(f"s_mov_b32 {sreg_tmp[0]}, 0x05040100")
    k.e(f"s_mov_b32 {sreg_tmp[1]}, 0x07060302")
    for uu in range(4):
        ja, jb = 2 * uu, 2 * uu + 1
        for d in range(4):
            A = V + 4 * ja + d; B = V + 4 * jb + d
            k.e(f"v_perm_b32 v{t0}, v{B}, v{A}, {sreg_tmp[0]}")
            k.e(f"v_perm_b32 v{t1}, v{B}, v{A}, {sreg_tmp[1]}")
            k.e(f"v_dot2_f32_bf16 v{OA + 2 * d}, v{t0}, v{PP + uu}, v{OA + 2 * d}")
            k.e(f"v_dot2_f32_bf16 v{OA + 2 * d + 1}, v{t1}, v{PP + uu}, v{OA + 2 * d + 1}")
    OP = va.get(4, 2)
    for d in range(4):
        k.e(f"v_cvt_pk_bf16_f32 v{OP + d}, v{OA + 2 * d}, v{OA + 2 * d + 1}")
    k.e(f"v_add_u32 v{t1}, {s_row0}, v{v_t}")
    k.e(f"v_mul_u32_u24 v{t1}, 896, v{t1}")
    k.e(f"v_lshl_add_u32 v{t2}, {s_hg}, 1, v{v_hh}")
    k.e(f"v_mul_u32_u24 v{t2}, 56, v{t2}")
    k.e(f"v_lshlrev_b32 v{t3}, 4, v{v_u}")
    k.e(f"v_add3_u32 v{t1}, v{t1}, v{t2}, v{t3}")
    k.e(f"buffer_store_dwordx2 v[{OP}:{OP + 1}], v{t1}, s[{srd_out}:{srd_out + 3}], 0 offen")
    k.e(f"v_cmp_gt_u32 vcc, 3, v{v_u}")
    k.e(f"s_and_saveexec_b64 {sreg_tmp[2]}, vcc")
    k.e(f"buffer_store_dwordx2 v[{OP + 2}:{OP + 3}], v{t1}, s[{srd_out}:{srd_out + 3}], 0 offen offset:8")
    k.e(f"s_mov_b64 exec, {sreg_tmp[2]}")


def gen_attn(name, L):
    k = Kern(name)
    nwg = 32 * 8
    done = f"L_{name}_done"
    k.e(f"s_cmp_ge_u32 s2, {nwg}")
    k.e(f"s_cbranch_scc1 {done}")
    k.e(f"s_load_dwordx2 s[40:41], s[0:1], {ARG['ws']}")
    k.e("s_lshr_b32 s4, s2, 3")
    k.e("s_and_b32 s5, s2, 7")
    k.e("s_lshl_b32 s6, s4, 6")
    k.e("s_waitcnt lgkmcnt(0)")
    make_srd_from(k, 12, 40, S * 3072, add=getattr(WS, f"QKV{L}"))
    make_srd_from(k, 16, 40, S * D * 2, add=getattr(WS, f"O{L}"))
    va = VAlloc(1)
    vp = va.get(); vrow = va.get(); vc = va.get(); vg = va.get(); vl = va.get(); vt = va.get()
    ST = va.get(16, 4)
    k.e(f"s_mul_i32 s7, s5, 384")
    k.e(f"s_sub_u32 s42, s6, 16")
    m, sh = magic_div(24, 2048)
    k.e(f"s_mov_b32 s43, 0x{m:x}")
    idx = []
    for i in range(4):
        k.e(f"v_add_u32 v{vp}, {512 * i}, v0")
        k.e(f"v_mul_hi_u32 v{vrow}, v{vp}, s43")
        if sh:
            k.e(f"v_lshrrev_b32 v{vrow}, {sh}, v{vrow}")
        k.e(f"v_mul_u32_u24 v{vt}, 24, v{vrow}")
        k.e(f"v_sub_u32 v{vc}, v{vp}, v{vt}")
        k.e(f"v_add_u32 v{vg}, s42, v{vrow}")
        k.e(f"v_mul_lo_u32 v{vg}, v{vg}, 3072" if False else f"s_movk_i32 s44, 3072")
        k.e(f"v_mul_lo_u32 v{vg}, v{vg}, s44")
        k.e(f"v_lshl_add_u32 v{vg}, v{vc}, 4, v{vg}")
        k.e(f"v_add_u32 v{vg}, s7, v{vg}")
        if i == 3:
            k.e(f"v_cmp_gt_u32 vcc, 1920, v{vp}")
            k.e(f"v_mov_b32 v{vt}, -1")
            k.e(f"v_cndmask_b32 v{vg}, v{vt}, v{vg}, vcc")
        idx.append(k.e(f"buffer_load_dwordx4 v[{ST + 4 * i}:{ST + 4 * i + 3}], v{vg}, s[12:15], 0 offen"))
    for i in range(4):
        k.e(f"v_add_u32 v{vp}, {512 * i}, v0")
        k.e(f"v_mul_hi_u32 v{vrow}, v{vp}, s43")
        if sh:
            k.e(f"v_lshrrev_b32 v{vrow}, {sh}, v{vrow}")
        k.e(f"v_mul_u32_u24 v{vt}, 24, v{vrow}")
        k.e(f"v_sub_u32 v{vc}, v{vp}, v{vt}")
        k.e(f"v_mul_u32_u24 v{vl}, {PQ}, v{vrow}")
        k.e(f"v_lshl_add_u32 v{vl}, v{vc}, 4, v{vl}")
        k.wait_vm(idx[i])
        if i == 3:
            k.e(f"v_cmp_gt_u32 vcc, 1920, v{vp}")
            k.e("s_and_saveexec_b64 s[46:47], vcc")
        k.e(f"ds_write_b128 v{vl}, v[{ST + 4 * i}:{ST + 4 * i + 3}]")
        if i == 3:
            k.e("s_mov_b64 exec, s[46:47]")
    k.e("s_waitcnt lgkmcnt(0)")
    k.e("s_barrier")
    emit_attention(k, va, 0, "s6", "s5", 16, ("s44", "s45", "s[46:47]"))
    k.label(done)
    k.e("s_endpgm")
    return k, dict(grid=nwg, block=512, lds=80 * PQ, nvgpr=va.n, nsgpr=64)

def write_file(kernels, path):
    hdr = open(f"cdna_kernels/{NAME}.s.ref").read().split("; Override launch")[0]
    out = hdr
    for (k, meta) in kernels:
        out += f"; @launch kernel={k.name} grid=({meta['grid']},1,1) block=({meta['block']},1,1) lds={meta['lds']}\n"
    out += '.amdgcn_target "amdgcn-amd-amdhsa--gfx950"\n.text\n'
    descs = ""
    seen = set()
    for (k, meta) in kernels:
        if k.name in seen:
            continue
        seen.add(k.name)
        nv = meta.get("nvgpr", 256)
        nv8 = (nv + 7) // 8 * 8
        txt, desc = kernel_text(k, nvgpr=nv8, nsgpr=meta.get("nsgpr", 102), accum=min(256, (nv8 + 3) // 4 * 4))
        out += txt
        descs += desc
    out += '.section .rodata,"a"\n' + descs
    open(path, "w").write(out)


def build_list():
    ks = [gen_prep()]
    for L in (0, 1):
        for (nm, cfg) in phase_cfgs(L):
            ks.append(gen_gemm(f"{nm}{L}_kernel", cfg))
            if nm == "qkv":
                ks.append(gen_attn(f"attn{L}_kernel", L))
    return ks


if __name__ == "__main__":
    ks = build_list()
    out = sys.argv[1] if len(sys.argv) > 1 else "dev.s"
    write_file(ks, out)
    for k, meta in ks:
        print(k.name, meta)
    regions = {}
    for L in (0, 1):
        a, b = f"L{2*L}_", f"L{2*L+1}_"
        regions[a + "o"] = [getattr(WS, f"O{L}"), S, D]
        regions[a + "xa"] = [getattr(WS, f"XA{L}"), S, D]
        regions[b + "y"] = [getattr(WS, f"Y{L}"), S, D]
        regions[b + "h"] = [getattr(WS, f"H{L}"), S, D]
        regions[b + "x1"] = [getattr(WS, f"X1{L}"), S, D]
        regions[b + "g"] = [getattr(WS, f"G{L}"), S, F]
        if L == 0:
            regions[b + "xb"] = [getattr(WS, f"XB{L}"), S, D]
        regions[f"qkvp{L}"] = [getattr(WS, f"QKV{L}"), S, 1536]
    json.dump({"regions": regions, "nlaunch": None}, open("spec.json", "w"))
    print("ws bytes used:", _off[0])
```

```python
import sys, json
sys.path.insert(0, "gen")
from asmlib import Kern, kernel_text, f32hex

NAME = "interleave_layers__sliding_local_dilated__mixer_s_mlp__prompt"
S, D, F = 2048, 448, 1792

ARG = dict(A_x=0, A_wqkv=8, A_wo=16, B_x=24, B_w1=32, B_w2=40, B_w3=48, B_w4=56, out=64, dbg=72, ws=80)
WS_BYTES = 268435456

class WS:
    pass

_off = [0]
def ws_alloc(nbytes):
    o = _off[0]
    _off[0] = (o + nbytes + 4095) // 4096 * 4096
    return o

WS.WP_QKV = ws_alloc(96 * 14 * 1024)
WS.WP_WO = ws_alloc(28 * 14 * 1024)
WS.WP_W1 = ws_alloc(28 * 14 * 1024)
WS.WP_W2 = ws_alloc(28 * 14 * 1024)
WS.WP_W3 = ws_alloc(112 * 14 * 1024)
WS.WP_W4 = ws_alloc(28 * 56 * 1024)
for L in (0, 1):
    setattr(WS, f"QKV{L}", ws_alloc(S * 1536 * 2))
    for n in ("O", "XA", "Y", "H", "X1", "XB"):
        setattr(WS, f"{n}{L}", ws_alloc(S * D * 2))
    setattr(WS, f"G{L}", ws_alloc(S * F * 2))

def magic_div(d, maxn):
    for sh in range(0, 8):
        m = ((1 << (32 + sh)) + d - 1) // d
        if m >= (1 << 32):
            continue
        ok = all(((n * m) >> (32 + sh)) == n // d for n in range(maxn))
        if ok:
            return m, sh
    raise ValueError


def s_divmod(k, sq, sr, sn, d, maxn, stmp):
    m, sh = magic_div(d, maxn)
    k.e(f"s_mul_hi_u32 {sq}, {sn}, 0x{m:x}")
    if sh:
        k.e(f"s_lshr_b32 {sq}, {sq}, {sh}")
    k.e(f"s_mul_i32 {stmp}, {sq}, {d}")
    k.e(f"s_sub_u32 {sr}, {sn}, {stmp}")


def load_srd(k, sdst, argoff, nbytes, add=0, stmp=None):
    raise NotImplementedError


def make_srd_from(k, sdst, sptr, nbytes, add=0):
    if add:
        k.e(f"s_add_u32 s{sdst}, s{sptr}, 0x{add:x}")
        k.e(f"s_addc_u32 s{sdst+1}, s{sptr+1}, 0")
    else:
        k.e(f"s_mov_b32 s{sdst}, s{sptr}")
        k.e(f"s_mov_b32 s{sdst+1}, s{sptr+1}")
    k.e(f"s_and_b32 s{sdst+1}, s{sdst+1}, 0xffff")
    k.e(f"s_mov_b32 s{sdst+2}, 0x{nbytes:x}")
    k.e(f"s_mov_b32 s{sdst+3}, 0x00020000")


PREP_MATS = [
    ("A_wqkv", 448, 1344, WS.WP_QKV, 96, "qkv"),
    ("A_wo", 448, 448, WS.WP_WO, 28, "plain"),
    ("B_w1", 448, 448, WS.WP_W1, 28, "plain"),
    ("B_w2", 448, 448, WS.WP_W2, 28, "plain"),
    ("B_w3", 448, 1792, WS.WP_W3, 112, "plain"),
    ("B_w4", 1792, 448, WS.WP_W4, 28, "plain"),
]
PREP_NBLK = sum(nt * (K // 32) for (_, K, N, _, nt, _) in PREP_MATS)


def gen_prep():
    k = Kern("prep_kernel")
    k.e("v_lshrrev_b32 v1, 6, v0")
    k.e("s_nop 0")
    k.e("v_readfirstlane_b32 s3, v1")
    k.e("s_lshl_b32 s4, s2, 2")
    k.e("s_add_u32 s4, s4, s3")
    k.e(f"s_cmp_ge_u32 s4, {PREP_NBLK}")
    k.e("s_cbranch_scc1 L_prep_done")
    k.e("s_load_dwordx4 s[8:11], s[0:1], 0")
    k.e("s_load_dwordx4 s[12:15], s[0:1], 16")
    k.e("s_load_dwordx4 s[16:19], s[0:1], 32")
    k.e("s_load_dwordx4 s[20:23], s[0:1], 48")
    k.e(f"s_load_dwordx2 s[24:25], s[0:1], {ARG['ws']}")
    k.e("v_and_b32 v2, 63, v0")
    k.e("v_lshrrev_b32 v3, 4, v2")
    k.e("v_and_b32 v4, 15, v2")
    k.e("v_lshlrev_b32 v5, 4, v2")
    k.e("s_waitcnt lgkmcnt(0)")
    make_srd_from(k, 28, 24, WS_BYTES)
    ptr = {"A_wqkv": 10, "A_wo": 12, "B_w1": 16, "B_w2": 18, "B_w3": 20, "B_w4": 22}
    base = 0
    for (arg, K, N, wsoff, ntiles, kind) in PREP_MATS:
        nb = ntiles * (K // 32)
        KS = K // 32
        lab_next = f"L_prep_n_{arg}"
        k.e(f"s_cmp_ge_u32 s4, {base + nb}")
        k.e(f"s_cbranch_scc1 {lab_next}")
        k.e(f"s_sub_u32 s5, s4, {base}")
        s_divmod(k, "s6", "s7", "s5", KS, nb, "s32")
        if kind == "plain":
            k.e("s_lshl_b32 s33, s6, 4")
        else:
            s_divmod(k, "s34", "s35", "s6", 12, 96, "s32")
            k.e("s_lshr_b32 s36, s35, 2")
            k.e("s_and_b32 s37, s35, 3")
            k.e("s_mul_i32 s33, s36, 448")
            k.e("s_mul_i32 s32, s34, 56")
            k.e("s_add_u32 s33, s33, s32")
            k.e("s_lshl_b32 s32, s37, 4")
            k.e("s_add_u32 s33, s33, s32")
        make_srd_from(k, 40, ptr[arg], K * N * 2)
        k.e(f"s_mul_i32 s44, s7, {32 * N}")
        k.e("s_add_u32 s44, s44, s33")
        k.e("s_lshl_b32 s44, s44, 1")
        k.e(f"s_movk_i32 s45, {8 * N}")
        k.e("v_mul_lo_u32 v6, v3, s45")
        k.e("v_add_lshl_u32 v6, v6, v4, 1")
        for j in range(8):
            k.e(f"s_add_u32 s46, s44, {j * N * 2}")
            k.e(f"buffer_load_ushort v{16 + j}, v6, s[40:43], s46 offen")
        k.e(f"s_lshl_b32 s47, s5, 10")
        k.e(f"s_add_u32 s47, s47, 0x{wsoff:x}")
        k.e("s_waitcnt vmcnt(0)")
        for j in range(4):
            k.e(f"v_lshl_or_b32 v{8 + j}, v{17 + 2 * j}, 16, v{16 + 2 * j}")
        k.e("buffer_store_dwordx4 v[8:11], v5, s[28:31], s47 offen")
        k.e("s_endpgm")
        k.label(lab_next)
        base += nb
    k.label("L_prep_done")
    k.e("s_endpgm")
    grid = (PREP_NBLK + 3) // 4
    return k, dict(grid=grid, block=256, lds=0, nvgpr=24, nsgpr=48)


INV448 = f32hex(1.0 / 448.0)
EPS = f32hex(1e-5)
GELU_C1 = f32hex(-2.0 * 0.7978845608028654 * 1.4426950408889634)
GELU_K = f32hex(0.044715)

class VAlloc:
    def __init__(self, start=1, limit=256):
        self.n = start
        self.limit = limit
    def get(self, cnt=1, align=1):
        self.n = (self.n + align - 1) // align * align
        b = self.n
        self.n += cnt
        assert self.n <= self.limit, f"out of VGPRs {self.n}"
        return b


def emit_bf16_round(k, dst_f32, src_f32, tmp):
    k.e(f"v_cvt_pk_bf16_f32 v{tmp}, v{src_f32}, v{src_f32}")
    k.e(f"v_lshlrev_b32 v{dst_f32}, 16, v{tmp}")


def emit_row_reduce(k, vsum, vt, lpr):
    k.e(f"v_add_f32_dpp v{vt}, v{vsum}, v{vsum} quad_perm:[1,0,3,2] row_mask:0xf bank_mask:0xf")
    k.e(f"v_add_f32_dpp v{vsum}, v{vt}, v{vt} quad_perm:[2,3,0,1] row_mask:0xf bank_mask:0xf")
    k.e(f"v_add_f32_dpp v{vt}, v{vsum}, v{vsum} row_half_mirror row_mask:0xf bank_mask:0xf")
    if lpr == 16:
        k.e(f"v_add_f32_dpp v{vsum}, v{vt}, v{vt} row_mirror row_mask:0xf bank_mask:0xf")
    else:
        k.e(f"v_mov_b32 v{vsum}, v{vt}")


def emit_ln(k, X, nd, lpr, T):
    a0, a1, a2, a3, t0, mf, dl, lo, hi, s2a, s2b, rv = [T + i for i in range(12)]
    for i, r in enumerate((a0, a1, a2, a3)):
        k.e(f"v_mov_b32 v{r}, 0")
    for d in range(nd):
        acc = (a0, a1, a2, a3)[d % 4]
        k.e(f"v_dot2_f32_bf16 v{acc}, v{X + d}, s28, v{acc}")
    k.e(f"v_add_f32 v{a0}, v{a0}, v{a1}")
    k.e(f"v_add_f32 v{a2}, v{a2}, v{a3}")
    k.e(f"v_add_f32 v{a0}, v{a0}, v{a2}")
    emit_row_reduce(k, a0, t0, lpr)
    k.e(f"v_mul_f32 v{a0}, {INV448}, v{a0}")
    emit_bf16_round(k, mf, a0, t0)
    k.e(f"v_sub_f32 v{dl}, v{a0}, v{mf}")
    k.e(f"v_mov_b32 v{s2a}, 0")
    k.e(f"v_mov_b32 v{s2b}, 0")
    for d in range(nd):
        k.e(f"v_lshlrev_b32 v{lo}, 16, v{X + d}")
        k.e(f"v_and_b32 v{hi}, 0xffff0000, v{X + d}")
        k.e(f"v_sub_f32 v{lo}, v{lo}, v{mf}")
        k.e(f"v_sub_f32 v{hi}, v{hi}, v{mf}")
        k.e(f"v_fmac_f32 v{s2a}, v{lo}, v{lo}")
        k.e(f"v_fmac_f32 v{s2b}, v{hi}, v{hi}")
        k.e(f"v_cvt_pk_bf16_f32 v{X + d}, v{lo}, v{hi}")
    k.e(f"v_add_f32 v{s2a}, v{s2a}, v{s2b}")
    emit_row_reduce(k, s2a, t0, lpr)
    k.e(f"v_mul_f32 v{s2a}, {INV448}, v{s2a}")
    k.e(f"v_fma_f32 v{s2a}, -v{dl}, v{dl}, v{s2a}")
    emit_bf16_round(k, s2a, s2a, t0)
    k.e(f"v_add_f32 v{s2a}, {EPS}, v{s2a}")
    emit_bf16_round(k, s2a, s2a, t0)
    k.e(f"v_sqrt_f32 v{s2a}, v{s2a}")
    emit_bf16_round(k, s2a, s2a, t0)
    k.e(f"v_rcp_f32 v{rv}, v{s2a}")
    k.e(f"v_fma_f32 v{t0}, -v{s2a}, v{rv}, 2.0")
    k.e(f"v_mul_f32 v{rv}, v{rv}, v{t0}")
    for d in range(nd):
        k.e(f"v_lshlrev_b32 v{lo}, 16, v{X + d}")
        k.e(f"v_and_b32 v{hi}, 0xffff0000, v{X + d}")
        k.e(f"v_mul_f32 v{lo}, v{lo}, v{rv}")
        k.e(f"v_mul_f32 v{hi}, v{hi}, v{rv}")
        k.e(f"v_cvt_pk_bf16_f32 v{X + d}, v{lo}, v{hi}")


def emit_gelu_pair(k, pk, T):
    x0, x1, t0, t1 = T, T + 1, T + 2, T + 3
    k.e(f"v_lshlrev_b32 v{x0}, 16, v{pk}")
    k.e(f"v_and_b32 v{x1}, 0xffff0000, v{pk}")
    for (x, t) in ((x0, t0), (x1, t1)):
        k.e(f"v_mul_f32 v{t}, v{x}, v{x}")
    for (x, t) in ((x0, t0), (x1, t1)):
        k.e(f"v_fma_f32 v{t}, v{t}, s29, 1.0")
    for (x, t) in ((x0, t0), (x1, t1)):
        k.e(f"v_mul_f32 v{t}, v{t}, v{x}")
    for (x, t) in ((x0, t0), (x1, t1)):
        k.e(f"v_mul_f32 v{t}, s30, v{t}")
    for (x, t) in ((x0, t0), (x1, t1)):
        k.e(f"v_exp_f32 v{t}, v{t}")
    for (x, t) in ((x0, t0), (x1, t1)):
        k.e(f"v_add_f32 v{t}, 1.0, v{t}")
    for (x, t) in ((x0, t0), (x1, t1)):
        k.e(f"v_rcp_f32 v{t}, v{t}")
    for (x, t) in ((x0, t0), (x1, t1)):
        k.e(f"v_mul_f32 v{x}, v{x}, v{t}")
    k.e(f"v_cvt_pk_bf16_f32 v{pk}, v{x0}, v{x1}")


def gen_gemm(name, cfg):
    K = cfg["K"]; KS = K // 32; TM = cfg["TM"]; NCB = cfg["NCB"]
    NRB = S // TM
    P = K * 2 + 32
    LPR = 512 // TM
    RPW = 64 // LPR
    k = Kern(name)
    nwg = NRB * NCB
    done = f"L_{name}_done"
    PROF = cfg.get("prof", False)
    stamp_n = [0]
    def stamp():
        if PROF:
            i = stamp_n[0]
            k.e(f"s_memtime s[{70 + 2 * i}:{71 + 2 * i}]")
            stamp_n[0] += 1
    k.e(f"s_cmp_ge_u32 s2, {nwg}")
    k.e(f"s_cbranch_scc1 {done}")
    stamp()
    k.e("s_load_dwordx4 s[32:35], s[0:1], 0")
    k.e(f"s_load_dwordx4 s[36:39], s[0:1], {ARG['out']}")
    k.e(f"s_load_dwordx2 s[40:41], s[0:1], {ARG['ws']}")
    va = VAlloc(1)
    v_lane = va.get(); v_m = va.get(); v_g = va.get(); v_t0 = va.get(); v_t1 = va.get()
    k.e(f"v_lshrrev_b32 v{v_t0}, 6, v0")
    k.e(f"v_and_b32 v{v_lane}, 63, v0")
    k.e(f"v_readfirstlane_b32 s3, v{v_t0}")
    s_divmod(k, "s4", "s5", "s2", NCB, nwg, "s42")
    k.e(f"s_mul_i32 s6, s4, {TM}")
    k.e(f"v_and_b32 v{v_m}, 15, v{v_lane}")
    k.e(f"v_lshrrev_b32 v{v_g}, 4, v{v_lane}")
    k.e("s_mov_b32 s28, 0x3f803f80")
    k.e(f"s_mov_b32 s29, {GELU_K}")
    k.e(f"s_mov_b32 s30, {GELU_C1}")
    k.e("s_waitcnt lgkmcnt(0)")
    stamp()

    def srd(sdst, spec):
        slot, wsoff, pitch, nbytes = spec
        if slot == "A_x":
            make_srd_from(k, sdst, 32, nbytes)
        elif slot == "out":
            make_srd_from(k, sdst, 36, nbytes)
        else:
            make_srd_from(k, sdst, 40, nbytes, add=wsoff)
    make_srd_from(k, 8, 40, WS_BYTES)
    srd(12, cfg["src"])
    srd(16, cfg["dst"])
    if cfg.get("res1"):
        srd(20, cfg["res1"])
    if cfg.get("res2"):
        srd(24, cfg["res2"])
    if cfg.get("ystore") is not None:
        make_srd_from(k, 44, 40, S * D * 2, add=cfg["ystore"])

    src_pitch = cfg["src"][2]
    pro = cfg["pro"]
    if pro in ("ln", "ln2", "shift"):
        PB = 128 // LPR
    else:
        PB = 16 if (K * 2) % (LPR * 16) == 0 else 8
    chunk = LPR * PB
    ninstr = (K * 2) // chunk
    dwp = PB // 4
    nd = ninstr * dwp
    X = va.get(nd, 4)
    v_r = va.get(); v_c = va.get(); v_soff = va.get(); v_lw = va.get()
    lg = {8: 3, 16: 4}[LPR]
    k.e(f"v_lshrrev_b32 v{v_r}, {lg}, v{v_lane}")
    k.e(f"v_and_b32 v{v_c}, {LPR - 1}, v{v_lane}")
    k.e(f"s_mul_i32 s42, s3, {RPW}")
    k.e(f"v_add_u32 v{v_r}, s42, v{v_r}")
    k.e(f"v_mul_u32_u24 v{v_lw}, {P}, v{v_r}")
    k.e(f"v_lshl_add_u32 v{v_lw}, v{v_c}, {PB.bit_length() - 1}, v{v_lw}")
    k.e(f"v_add_u32 v{v_soff}, s6, v{v_r}")
    k.e(f"s_movk_i32 s42, {src_pitch}")
    k.e(f"v_mul_lo_u32 v{v_soff}, v{v_soff}, s42")
    k.e(f"v_lshl_add_u32 v{v_soff}, v{v_c}, {PB.bit_length() - 1}, v{v_soff}")
    ldmn = {8: "buffer_load_dwordx2", 16: "buffer_load_dwordx4"}[PB]
    src_idx = []
    if pro == "shift":
        shifts = [1, -1, 2, -2]
        v_sh = va.get()
        for i in range(ninstr):
            b0 = i * chunk
            q0 = b0 // 224
            q1 = (b0 + chunk - 1) // 224
            d0 = (-shifts[q0] * src_pitch + b0) & 0xffffffff
            if q0 == q1:
                k.e(f"v_add_u32 v{v_sh}, 0x{d0:x}, v{v_soff}")
            else:
                d1 = (-shifts[q1] * src_pitch + b0) & 0xffffffff
                cb_ = ((q1 * 224) - b0) // PB
                k.e(f"v_cmp_gt_u32 vcc, {cb_}, v{v_c}")
                k.e(f"v_mov_b32 v{v_t0}, 0x{d1:x}")
                k.e(f"v_mov_b32 v{v_t1}, 0x{d0:x}")
                k.e(f"v_cndmask_b32 v{v_sh}, v{v_t0}, v{v_t1}, vcc")
                k.e(f"v_add_u32 v{v_sh}, v{v_sh}, v{v_soff}")
            src_idx.append(k.e(f"{ldmn} v[{X + i * dwp}:{X + i * dwp + dwp - 1}], v{v_sh}, s[12:15], 0 offen"))
    else:
        for i in range(ninstr):
            src_idx.append(k.e(f"{ldmn} v[{X + i * dwp}:{X + i * dwp + dwp - 1}], v{v_soff}, s[12:15], 0 offen offset:{i * chunk}"))

    waves = cfg["waves"]
    variants = {}
    for w, spec in enumerate(waves):
        key = None if spec is None else (spec["b"], spec["m0"], spec["a"])
        variants.setdefault(key, []).append(w)

    maxb = max(spec["b"] for spec in waves if spec)
    depth = cfg.get("depth", KS)
    WF = va.get(maxb * depth * 4, 4)
    v_w = va.get()
    k.e(f"v_lshlrev_b32 v{v_w}, 4, v{v_lane}")
    k.e("s_mov_b32 s43, 0")
    firsts = [spec["t0"] if spec else 0 for spec in waves]
    for w in range(8):
        if firsts[w]:
            k.e(f"s_cmp_eq_u32 s3, {w}")
            k.e(f"s_cselect_b32 s43, {firsts[w]}, s43")
    k.e(f"s_mul_i32 s48, s5, {cfg['tiles_per_cb']}")
    k.e("s_add_u32 s48, s48, s43")
    k.e(f"s_mul_i32 s48, s48, {KS * 1024}")
    k.e(f"s_add_u32 s48, s48, 0x{cfg['wp_off']:x}")

    w_idx = {}
    def issue_w(j, s):
        slot = s % depth
        r = WF + (j * depth + slot) * 4
        off = (j * KS + s) * 1024
        hi_off = off & ~4095
        lo_off = off & 4095
        if hi_off:
            k.e(f"s_add_u32 s49, s48, 0x{hi_off:x}")
            sreg = "s49"
        else:
            sreg = "s48"
        w_idx[(j, s)] = k.e(f"buffer_load_dwordx4 v[{r}:{r + 3}], v{v_w}, s[8:11], {sreg} offen offset:{lo_off}")

    for s in range(min(depth, KS)):
        for j in range(maxb):
            issue_w(j, s)

    k.wait_vm(src_idx[-1])
    stamp()
    T = va.get(12)
    if pro in ("ln", "ln2"):
        emit_ln(k, X, nd, LPR, T)
    if pro == "ln2":
        if cfg.get("ystore") is not None:
            lab = k.newlabel("noy")
            k.e("s_cmp_lg_u32 s5, 0")
            k.e(f"s_cbranch_scc1 {lab}")
            stmn = {8: "buffer_store_dwordx2", 16: "buffer_store_dwordx4"}[PB]
            for i in range(ninstr):
                k.e(f"{stmn} v[{X + i * dwp}:{X + i * dwp + dwp - 1}], v{v_soff}, s[44:47], 0 offen offset:{i * chunk}")
            k.label(lab)
            k.e("s_nop 1")
        emit_ln(k, X, nd, LPR, T)
    wrmn = {8: "ds_write_b64", 16: "ds_write_b128"}[PB]
    for i in range(ninstr):
        k.e(f"{wrmn} v{v_lw}, v[{X + i * dwp}:{X + i * dwp + dwp - 1}] offset:{i * chunk}")
    k.e("s_waitcnt lgkmcnt(0)")
    stamp()
    k.e("s_barrier")
    stamp()

    dst_pitch = cfg["dst"][2]
    v_x = va.get()
    k.e(f"v_mul_u32_u24 v{v_x}, {P}, v{v_m}")
    k.e(f"v_lshl_add_u32 v{v_x}, v{v_g}, 4, v{v_x}")
    v_eo = va.get()
    k.e(f"s_movk_i32 s42, {dst_pitch}")
    k.e(f"v_mul_lo_u32 v{v_eo}, v{v_m}, s42")
    k.e(f"v_lshl_add_u32 v{v_eo}, v{v_g}, 3, v{v_eo}")

    vbase_after_common = va.n
    endlab = f"L_{name}_end"
    vlist = [(key, ws_) for key, ws_ in variants.items() if key is not None]
    for vi, (key, ws_) in enumerate(vlist):
        pass
    labs = {key: k.newlabel("var") for key, _ in vlist}
    for key, ws_ in vlist:
        for w in ws_:
            k.e(f"s_cmp_eq_u32 s3, {w}")
            k.e(f"s_cbranch_scc1 {labs[key]}")
    k.e(f"s_branch {endlab}")
    maxv = va.n
    for key, ws_ in vlist:
        b, m0, a = key
        va2 = VAlloc(vbase_after_common)
        k.label(labs[key])
        k.e("s_nop 4")
        ACC = va2.get(a * b * 4, 4)
        XF = va2.get(2 * a * 4, 4)
        for r in range(a * b * 4):
            k.e(f"v_mov_b32 v{ACC + r}, 0")
        RES = None
        nres = {"store": 0, "gelu": 0, "res1": 1, "res2": 2}[cfg["epi"]]
        if nres:
            RES = va2.get(a * b * 2 * nres, 2)
        k.e(f"s_mul_i32 s50, s6, {dst_pitch}")
        k.e(f"s_mul_i32 s51, s5, {cfg['TNcols'] * 2}")
        k.e("s_add_u32 s50, s50, s51")
        k.e(f"s_lshl_b32 s51, s43, 5")
        k.e("s_add_u32 s50, s50, s51")
        res_idx = []
        def tile_soff(i):
            o = (m0 + i) * 16 * dst_pitch
            if o == 0:
                return "s50"
            k.e(f"s_add_u32 s52, s50, {o}")
            return "s52"
        if nres:
            for i in range(a):
                sr = tile_soff(i)
                for j in range(b):
                    for q in range(nres):
                        r = RES + ((i * b + j) * nres + q) * 2
                        srdn = (20, 24)[q]
                        res_idx.append(k.e(f"buffer_load_dwordx2 v[{r}:{r + 1}], v{v_eo}, s[{srdn}:{srdn + 3}], {sr} offen offset:{j * 32}"))

        def issue_x(s):
            buf = s % 2
            idx = None
            for i in range(a):
                r = XF + (buf * a + i) * 4
                idx = k.e(f"ds_read_b128 v[{r}:{r + 3}], v{v_x} offset:{(m0 + i) * 16 * P + 64 * s}")
            return idx
        xi = issue_x(0)
        for s in range(KS):
            nxt = issue_x(s + 1) if s + 1 < KS else None
            k.wait_lg(xi)
            for j in range(b):
                if (j, s) in w_idx:
                    k.wait_vm(w_idx[(j, s)])
            buf = s % 2
            for j in range(b):
                wr = WF + (j * depth + (s % depth)) * 4
                for i in range(a):
                    xr = XF + (buf * a + i) * 4
                    ar = ACC + (i * b + j) * 4
                    k.e(f"v_mfma_f32_16x16x32_bf16 v[{ar}:{ar + 3}], v[{wr}:{wr + 3}], v[{xr}:{xr + 3}], v[{ar}:{ar + 3}]")
            if s + depth < KS:
                for j in range(b):
                    issue_w(j, s + depth)
            xi = nxt
        stamp_save = stamp_n[0]
        stamp()
        TE = va2.get(8)
        if res_idx:
            k.wait_vm(res_idx[-1])
        for i in range(a):
            sr = tile_soff(i)
            for j in range(b):
                ar = ACC + (i * b + j) * 4
                p0, p1 = TE, TE + 1
                k.e(f"v_cvt_pk_bf16_f32 v{p0}, v{ar}, v{ar + 1}")
                k.e(f"v_cvt_pk_bf16_f32 v{p1}, v{ar + 2}, v{ar + 3}")
                if cfg["epi"] == "gelu":
                    emit_gelu_pair(k, p0, TE + 2)
                    emit_gelu_pair(k, p1, TE + 2)
                elif nres:
                    for q in range(nres):
                        r = RES + ((i * b + j) * nres + q) * 2
                        for hq, pk in enumerate((p0, p1)):
                            lo, hi, rl, rh = TE + 2, TE + 3, TE + 4, TE + 5
                            k.e(f"v_lshlrev_b32 v{lo}, 16, v{pk}")
                            k.e(f"v_and_b32 v{hi}, 0xffff0000, v{pk}")
                            k.e(f"v_lshlrev_b32 v{rl}, 16, v{r + hq}")
                            k.e(f"v_and_b32 v{rh}, 0xffff0000, v{r + hq}")
                            k.e(f"v_add_f32 v{lo}, v{lo}, v{rl}")
                            k.e(f"v_add_f32 v{hi}, v{hi}, v{rh}")
                            k.e(f"v_cvt_pk_bf16_f32 v{pk}, v{lo}, v{hi}")
                if cfg.get("perturb"):
                    for pk in (p0, p1):
                        lo, hi = TE + 2, TE + 3
                        k.e(f"v_lshlrev_b32 v{lo}, 16, v{pk}")
                        k.e(f"v_and_b32 v{hi}, 0xffff0000, v{pk}")
                        k.e(f"v_mul_f32 v{lo}, {f32hex(cfg['perturb'])}, v{lo}")
                        k.e(f"v_mul_f32 v{hi}, {f32hex(cfg['perturb'])}, v{hi}")
                        k.e(f"v_cvt_pk_bf16_f32 v{pk}, v{lo}, v{hi}")
                k.e(f"buffer_store_dwordx2 v[{p0}:{p1}], v{v_eo}, s[16:19], {sr} offen offset:{j * 32}")
        if PROF:
            k.e("s_waitcnt vmcnt(0)")
        stamp()
        k.e(f"s_branch {endlab}")
        stamp_n[0] = stamp_save
        maxv = max(maxv, va2.n)
    k.label(endlab)
    if PROF:
        lab = k.newlabel("noprof")
        k.e(f"s_cmp_lg_u32 s2, {cfg.get('prof_wg', 0)}")
        k.e(f"s_cbranch_scc1 {lab}")
        k.e("s_cmp_lg_u32 s3, 0")
        k.e(f"s_cbranch_scc1 {lab}")
        k.e(f"s_load_dwordx2 s[66:67], s[0:1], {ARG['dbg']}")
        k.e("s_waitcnt lgkmcnt(0)")
        make_srd_from(k, 60, 66, 256)
        k.e("v_mov_b32 v1, 0")
        for i in range(8):
            k.e(f"v_mov_b32 v2, s{70 + 2 * i}")
            k.e(f"buffer_store_dword v2, v1, s[60:63], 0 offen offset:{4 * i}")
        k.label(lab)
    k.label(done)
    k.e("s_endpgm")
    lds = TM * P
    return k, dict(grid=nwg, block=512, lds=lds, nvgpr=maxv, nsgpr=96 if PROF else 64)


def waves_even(ntiles, a, m0=0):
    base = ntiles // 8
    extra = ntiles % 8
    counts = [base + (1 if w < extra else 0) for w in range(8)]
    out = []
    t = 0
    for w in range(8):
        if counts[w] == 0:
            out.append(None)
        else:
            out.append(dict(b=counts[w], t0=t, m0=m0, a=a))
        t += counts[w]
    return out


def phase_cfgs(L):
    xin = ("A_x", 0, D * 2, S * D * 2) if L == 0 else (None, WS.XB0, D * 2, S * D * 2)
    g = lambda n: getattr(WS, f"{n}{L}")
    buf = lambda n, cols=D: (None, g(n), cols * 2, S * cols * 2)
    cfgs = []
    cfgs.append(("qkv", dict(K=448, TM=64, NCB=8, tiles_per_cb=12, wp_off=WS.WP_QKV, waves=waves_even(12, 4),
                             pro="ln", src=xin, epi="store", dst=(None, g("QKV"), 1536 * 2, S * 1536 * 2), TNcols=192)))
    cfgs.append(("wo", dict(K=448, TM=32, NCB=4, tiles_per_cb=7, wp_off=WS.WP_WO, waves=waves_even(7, 2),
                            pro="plain", src=buf("O"), epi="res1", res1=xin, dst=buf("XA"), TNcols=112)))
    cfgs.append(("w1", dict(K=448, TM=32, NCB=4, tiles_per_cb=7, wp_off=WS.WP_W1, waves=waves_even(7, 2),
                            pro="ln2", src=buf("XA"), ystore=g("Y"), epi="gelu", dst=buf("H"), TNcols=112)))
    cfgs.append(("w2", dict(K=448, TM=32, NCB=4, tiles_per_cb=7, wp_off=WS.WP_W2, waves=waves_even(7, 2),
                            pro="shift", src=buf("H"), epi="res1", res1=buf("Y"), dst=buf("X1"), TNcols=112)))
    cfgs.append(("w3", dict(K=448, TM=64, NCB=7, tiles_per_cb=16, wp_off=WS.WP_W3, waves=waves_even(16, 4),
                            pro="ln", src=buf("X1"), epi="gelu", dst=buf("G", F), TNcols=256)))
    dst6 = buf("XB") if L == 0 else ("out", 0, D * 2, S * D * 2)
    cfgs.append(("w4", dict(K=1792, TM=32, NCB=4, tiles_per_cb=7, wp_off=WS.WP_W4, waves=waves_even(7, 2),
                            pro="plain", src=buf("G", F), epi="res2", res1=buf("X1"), res2=buf("XA"), dst=dst6,
                            TNcols=112, depth=16)))
    return cfgs


PQ = 392
SCALE = f32hex(28 ** -0.5)
LOG2E = f32hex(1.4426950408889634)


def emit_attention(k, va, lds_base, s_row0, s_hg, srd_out, sreg_tmp):
    v_u = va.get(); v_hh = va.get(); v_t = va.get(); v_aq = va.get(); v_ak = va.get(); v_av = va.get()
    t0 = va.get(); t1 = va.get(); t2 = va.get(); t3 = va.get()
    Q = va.get(14, 2); K0 = va.get(14, 2); K1 = va.get(14, 2)
    k.e(f"v_and_b32 v{v_u}, 3, v0")
    k.e(f"v_bfe_u32 v{v_hh}, v0, 2, 1")
    k.e(f"v_lshrrev_b32 v{v_t}, 3, v0")
    k.e(f"v_mul_u32_u24 v{v_aq}, {PQ}, v{v_t}")
    k.e(f"v_mul_u32_u24 v{t0}, 56, v{v_hh}")
    k.e(f"v_add_u32 v{v_aq}, v{v_aq}, v{t0}")
    k.e(f"v_add_u32 v{v_aq}, {lds_base + 16 * PQ}, v{v_aq}")
    k.e(f"v_mul_u32_u24 v{t0}, {4 * PQ}, v{v_u}")
    k.e(f"v_sub_u32 v{v_ak}, v{v_aq}, v{t0}")
    k.e(f"v_add_u32 v{v_ak}, 0x{(128 - 2 * PQ) & 0xffffffff:x}, v{v_ak}")
    k.e(f"v_lshlrev_b32 v{t0}, 4, v{v_u}")
    k.e(f"v_add_u32 v{v_av}, v{v_aq}, v{t0}")
    k.e(f"v_add_u32 v{v_av}, 0x{(256 - 14 * PQ) & 0xffffffff:x}, v{v_av}")
    for i in range(7):
        k.e(f"ds_read_b64 v[{Q + 2 * i}:{Q + 2 * i + 1}], v{v_aq} offset:{8 * i}")
    for i in range(7):
        k.e(f"ds_read_b64 v[{K0 + 2 * i}:{K0 + 2 * i + 1}], v{v_ak} offset:{2 * PQ + 8 * i}")
    for i in range(7):
        k.e(f"ds_read_b64 v[{K1 + 2 * i}:{K1 + 2 * i + 1}], v{v_ak} offset:{8 * i}")
    V = va.get(32, 2)
    for j in range(8):
        for h2 in range(2):
            k.e(f"ds_read_b64 v[{V + 4 * j + 2 * h2}:{V + 4 * j + 2 * h2 + 1}], v{v_av} offset:{(14 - 2 * j) * PQ + 8 * h2}")
    l0 = va.get(); l1 = va.get()
    k.e(f"v_mov_b32 v{l0}, 0")
    k.e(f"v_mov_b32 v{l1}, 0")
    k.e("s_waitcnt lgkmcnt(0)")
    for i in range(14):
        k.e(f"v_dot2_f32_bf16 v{l0}, v{Q + i}, v{K0 + i}, v{l0}")
        k.e(f"v_dot2_f32_bf16 v{l1}, v{Q + i}, v{K1 + i}, v{l1}")
    k.e(f"v_cvt_pk_bf16_f32 v{t0}, v{l0}, v{l1}")
    k.e(f"v_lshlrev_b32 v{l0}, 16, v{t0}")
    k.e(f"v_and_b32 v{l1}, 0xffff0000, v{t0}")
    k.e(f"v_mul_f32 v{l0}, {SCALE}, v{l0}")
    k.e(f"v_mul_f32 v{l1}, {SCALE}, v{l1}")
    k.e(f"v_cvt_pk_bf16_f32 v{t0}, v{l0}, v{l1}")
    k.e(f"v_lshlrev_b32 v{l0}, 16, v{t0}")
    k.e(f"v_and_b32 v{l1}, 0xffff0000, v{t0}")
    k.e(f"v_add_u32 v{t1}, {s_row0}, v{v_t}")
    k.e(f"v_lshlrev_b32 v{t2}, 2, v{v_u}")
    k.e(f"v_sub_u32 v{t1}, v{t1}, v{t2}")
    k.e(f"v_mov_b32 v{t3}, 0xce6e6b28")
    k.e(f"v_cmp_gt_i32 vcc, 0, v{t1}")
    k.e(f"v_cndmask_b32 v{l0}, v{l0}, v{t3}, vcc")
    k.e(f"v_cmp_gt_i32 vcc, 2, v{t1}")
    k.e(f"v_cndmask_b32 v{l1}, v{l1}, v{t3}, vcc")
    k.e(f"v_max_f32 v{t0}, v{l0}, v{l1}")
    k.e(f"v_max_f32_dpp v{t1}, v{t0}, v{t0} quad_perm:[1,0,3,2] row_mask:0xf bank_mask:0xf")
    k.e(f"v_max_f32_dpp v{t0}, v{t1}, v{t1} quad_perm:[2,3,0,1] row_mask:0xf bank_mask:0xf")
    k.e(f"v_sub_f32 v{l0}, v{l0}, v{t0}")
    k.e(f"v_sub_f32 v{l1}, v{l1}, v{t0}")
    k.e(f"v_mul_f32 v{l0}, {LOG2E}, v{l0}")
    k.e(f"v_mul_f32 v{l1}, {LOG2E}, v{l1}")
    k.e(f"v_exp_f32 v{l0}, v{l0}")
    k.e(f"v_exp_f32 v{l1}, v{l1}")
    k.e(f"v_add_f32 v{t0}, v{l0}, v{l1}")
    k.e(f"v_add_f32_dpp v{t1}, v{t0}, v{t0} quad_perm:[1,0,3,2] row_mask:0xf bank_mask:0xf")
    k.e(f"v_add_f32_dpp v{t0}, v{t1}, v{t1} quad_perm:[2,3,0,1] row_mask:0xf bank_mask:0xf")
    k.e(f"v_rcp_f32 v{t0}, v{t0}")
    k.e(f"v_mul_f32 v{l0}, v{l0}, v{t0}")
    k.e(f"v_mul_f32 v{l1}, v{l1}, v{t0}")
    k.e(f"v_cvt_pk_bf16_f32 v{t0}, v{l0}, v{l1}")
    PP = va.get(4)
    for uu in range(4):
        k.e(f"v_mov_b32_dpp v{PP + uu}, v{t0} quad_perm:[{uu},{uu},{uu},{uu}] row_mask:0xf bank_mask:0xf")
    OA = va.get(8)
    for d in range(8):
        k.e(f"v_mov_b32 v{OA + d}, 0")
    k.e(f"s_mov_b32 {sreg_tmp[0]}, 0x05040100")
    k.e(f"s_mov_b32 {sreg_tmp[1]}, 0x07060302")
    for uu in range(4):
        ja, jb = 2 * uu, 2 * uu + 1
        for d in range(4):
            A = V + 4 * ja + d; B = V + 4 * jb + d
            k.e(f"v_perm_b32 v{t0}, v{B}, v{A}, {sreg_tmp[0]}")
            k.e(f"v_perm_b32 v{t1}, v{B}, v{A}, {sreg_tmp[1]}")
            k.e(f"v_dot2_f32_bf16 v{OA + 2 * d}, v{t0}, v{PP + uu}, v{OA + 2 * d}")
            k.e(f"v_dot2_f32_bf16 v{OA + 2 * d + 1}, v{t1}, v{PP + uu}, v{OA + 2 * d + 1}")
    OP = va.get(4, 2)
    for d in range(4):
        k.e(f"v_cvt_pk_bf16_f32 v{OP + d}, v{OA + 2 * d}, v{OA + 2 * d + 1}")
    k.e(f"v_add_u32 v{t1}, {s_row0}, v{v_t}")
    k.e(f"v_mul_u32_u24 v{t1}, 896, v{t1}")
    k.e(f"v_lshl_add_u32 v{t2}, {s_hg}, 1, v{v_hh}")
    k.e(f"v_mul_u32_u24 v{t2}, 56, v{t2}")
    k.e(f"v_lshlrev_b32 v{t3}, 4, v{v_u}")
    k.e(f"v_add3_u32 v{t1}, v{t1}, v{t2}, v{t3}")
    k.e(f"buffer_store_dwordx2 v[{OP}:{OP + 1}], v{t1}, s[{srd_out}:{srd_out + 3}], 0 offen")
    k.e(f"v_cmp_gt_u32 vcc, 3, v{v_u}")
    k.e(f"s_and_saveexec_b64 {sreg_tmp[2]}, vcc")
    k.e(f"buffer_store_dwordx2 v[{OP + 2}:{OP + 3}], v{t1}, s[{srd_out}:{srd_out + 3}], 0 offen offset:8")
    k.e(f"s_mov_b64 exec, {sreg_tmp[2]}")


def gen_attn(name, L):
    k = Kern(name)
    nwg = 32 * 8
    done = f"L_{name}_done"
    k.e(f"s_cmp_ge_u32 s2, {nwg}")
    k.e(f"s_cbranch_scc1 {done}")
    k.e(f"s_load_dwordx2 s[40:41], s[0:1], {ARG['ws']}")
    k.e("s_lshr_b32 s4, s2, 3")
    k.e("s_and_b32 s5, s2, 7")
    k.e("s_lshl_b32 s6, s4, 6")
    k.e("s_waitcnt lgkmcnt(0)")
    make_srd_from(k, 12, 40, S * 3072, add=getattr(WS, f"QKV{L}"))
    make_srd_from(k, 16, 40, S * D * 2, add=getattr(WS, f"O{L}"))
    va = VAlloc(1)
    vp = va.get(); vrow = va.get(); vc = va.get(); vg = va.get(); vl = va.get(); vt = va.get()
    ST = va.get(16, 4)
    k.e(f"s_mul_i32 s7, s5, 384")
    k.e(f"s_sub_u32 s42, s6, 16")
    m, sh = magic_div(24, 2048)
    k.e(f"s_mov_b32 s43, 0x{m:x}")
    idx = []
    for i in range(4):
        k.e(f"v_add_u32 v{vp}, {512 * i}, v0")
        k.e(f"v_mul_hi_u32 v{vrow}, v{vp}, s43")
        if sh:
            k.e(f"v_lshrrev_b32 v{vrow}, {sh}, v{vrow}")
        k.e(f"v_mul_u32_u24 v{vt}, 24, v{vrow}")
        k.e(f"v_sub_u32 v{vc}, v{vp}, v{vt}")
        k.e(f"v_add_u32 v{vg}, s42, v{vrow}")
        k.e(f"v_mul_lo_u32 v{vg}, v{vg}, 3072" if False else f"s_movk_i32 s44, 3072")
        k.e(f"v_mul_lo_u32 v{vg}, v{vg}, s44")
        k.e(f"v_lshl_add_u32 v{vg}, v{vc}, 4, v{vg}")
        k.e(f"v_add_u32 v{vg}, s7, v{vg}")
        if i == 3:
            k.e(f"v_cmp_gt_u32 vcc, 1920, v{vp}")
            k.e(f"v_mov_b32 v{vt}, -1")
            k.e(f"v_cndmask_b32 v{vg}, v{vt}, v{vg}, vcc")
        idx.append(k.e(f"buffer_load_dwordx4 v[{ST + 4 * i}:{ST + 4 * i + 3}], v{vg}, s[12:15], 0 offen"))
    for i in range(4):
        k.e(f"v_add_u32 v{vp}, {512 * i}, v0")
        k.e(f"v_mul_hi_u32 v{vrow}, v{vp}, s43")
        if sh:
            k.e(f"v_lshrrev_b32 v{vrow}, {sh}, v{vrow}")
        k.e(f"v_mul_u32_u24 v{vt}, 24, v{vrow}")
        k.e(f"v_sub_u32 v{vc}, v{vp}, v{vt}")
        k.e(f"v_mul_u32_u24 v{vl}, {PQ}, v{vrow}")
        k.e(f"v_lshl_add_u32 v{vl}, v{vc}, 4, v{vl}")
        k.wait_vm(idx[i])
        if i == 3:
            k.e(f"v_cmp_gt_u32 vcc, 1920, v{vp}")
            k.e("s_and_saveexec_b64 s[46:47], vcc")
        k.e(f"ds_write_b128 v{vl}, v[{ST + 4 * i}:{ST + 4 * i + 3}]")
        if i == 3:
            k.e("s_mov_b64 exec, s[46:47]")
    k.e("s_waitcnt lgkmcnt(0)")
    k.e("s_barrier")
    emit_attention(k, va, 0, "s6", "s5", 16, ("s44", "s45", "s[46:47]"))
    k.label(done)
    k.e("s_endpgm")
    return k, dict(grid=nwg, block=512, lds=80 * PQ, nvgpr=va.n, nsgpr=64)


WS.STATS0 = ws_alloc(S * 8)
WS.STATS1 = ws_alloc(S * 8)


def emit_stats(k, X, nd, lpr, T, mode):
    A, B, mb, rv, s1, s2, t0, t1, t2, t3 = [T + i for i in range(10)]
    k.e(f"v_mov_b32 v{s1}, 0")
    k.e(f"v_mov_b32 v{s2}, 0")
    k.e(f"v_mov_b32 v{t2}, 0")
    k.e(f"v_mov_b32 v{t3}, 0")
    for d in range(nd):
        a1 = (s1, t2)[d & 1]
        a2 = (s2, t3)[d & 1]
        k.e(f"v_dot2_f32_bf16 v{a1}, v{X + d}, s28, v{a1}")
        k.e(f"v_dot2_f32_bf16 v{a2}, v{X + d}, v{X + d}, v{a2}")
    k.e(f"v_add_f32 v{s1}, v{s1}, v{t2}")
    k.e(f"v_add_f32 v{s2}, v{s2}, v{t3}")
    emit_row_reduce(k, s1, t0, lpr)
    emit_row_reduce(k, s2, t0, lpr)
    k.e(f"v_mul_f32 v{s1}, {INV448}, v{s1}")
    k.e(f"v_mul_f32 v{s2}, {INV448}, v{s2}")
    k.e(f"v_fma_f32 v{s2}, -v{s1}, v{s1}, v{s2}")
    k.e(f"v_max_f32 v{s2}, 0, v{s2}")
    emit_bf16_round(k, mb, s1, t0)
    emit_bf16_round(k, t1, s2, t0)
    k.e(f"v_add_f32 v{t1}, {EPS}, v{t1}")
    emit_bf16_round(k, t1, t1, t0)
    k.e(f"v_sqrt_f32 v{t1}, v{t1}")
    emit_bf16_round(k, t1, t1, t0)
    k.e(f"v_rcp_f32 v{rv}, v{t1}")
    k.e(f"v_fma_f32 v{t0}, -v{t1}, v{rv}, 2.0")
    k.e(f"v_mul_f32 v{rv}, v{rv}, v{t0}")
    if mode == "ln":
        k.e(f"v_mov_b32 v{A}, v{rv}")
        k.e(f"v_mul_f32 v{B}, v{mb}, v{rv}")
    else:
        k.e(f"v_sub_f32 v{t2}, v{s1}, v{mb}")
        k.e(f"v_mul_f32 v{t2}, v{t2}, v{rv}")
        emit_bf16_round(k, t2, t2, t0)
        k.e(f"v_mul_f32 v{t3}, v{rv}, v{rv}")
        k.e(f"v_mul_f32 v{t3}, v{t3}, v{s2}")
        emit_bf16_round(k, t3, t3, t0)
        k.e(f"v_add_f32 v{t3}, {EPS}, v{t3}")
        emit_bf16_round(k, t3, t3, t0)
        k.e(f"v_sqrt_f32 v{t3}, v{t3}")
        emit_bf16_round(k, t3, t3, t0)
        k.e(f"v_rcp_f32 v{t1}, v{t3}")
        k.e(f"v_fma_f32 v{t0}, -v{t3}, v{t1}, 2.0")
        k.e(f"v_mul_f32 v{t1}, v{t1}, v{t0}")
        k.e(f"v_mul_f32 v{A}, v{rv}, v{t1}")
        k.e(f"v_fma_f32 v{B}, v{mb}, v{rv}, v{t2}")
        k.e(f"v_mul_f32 v{B}, v{B}, v{t1}")


def gen_gemm2(name, cfg):
    K = cfg["K"]; KS = K // 32; TM = cfg["TM"]; NCB = cfg["NCB"]
    NRB = S // TM
    halo = cfg.get("halo", 0)
    ROWS = TM + halo
    P = K * 2 + 32
    LPR = 512 // TM
    RPW = 64 // LPR
    pro = cfg["pro"]
    has_ln = pro in ("ln", "ln2")
    fused_attn = cfg.get("attn", False)
    LSTAT = 0
    LQKV = ROWS * 8
    LX = LQKV + (80 * PQ if fused_attn else 0)
    LX = (LX + 15) // 16 * 16
    k = Kern(name)
    nwg = NRB * NCB
    done = f"L_{name}_done"
    PROF = cfg.get("prof", False)
    stamp_n = [0]
    def stamp():
        if PROF:
            i = stamp_n[0]
            k.e(f"s_memtime s[{70 + 2 * i}:{71 + 2 * i}]")
            stamp_n[0] += 1
    k.e(f"s_cmp_ge_u32 s2, {nwg}")
    k.e(f"s_cbranch_scc1 {done}")
    stamp()
    k.e("s_load_dwordx4 s[32:35], s[0:1], 0")
    k.e(f"s_load_dwordx4 s[36:39], s[0:1], {ARG['out']}")
    k.e(f"s_load_dwordx2 s[40:41], s[0:1], {ARG['ws']}")
    va = VAlloc(1)
    v_lane = va.get(); v_m = va.get(); v_g = va.get(); v_t0 = va.get(); v_t1 = va.get()
    _waves = cfg["waves"]
    _maxb = max(spec["b"] for spec in _waves if spec)
    _depth = cfg.get("depth", KS)
    v_w = va.get(); v_x = va.get(); v_eo = va.get(); v_sm = va.get()
    ONES = va.get(4, 4) if has_ln else None
    WF = va.get(_maxb * _depth * 4, 4)
    vbase = va.n
    k.e(f"v_lshrrev_b32 v{v_t0}, 6, v0")
    k.e(f"v_and_b32 v{v_lane}, 63, v0")
    k.e(f"v_readfirstlane_b32 s3, v{v_t0}")
    s_divmod(k, "s4", "s5", "s2", NCB, nwg, "s42")
    k.e(f"s_mul_i32 s6, s4, {TM}")
    k.e(f"v_and_b32 v{v_m}, 15, v{v_lane}")
    k.e(f"v_lshrrev_b32 v{v_g}, 4, v{v_lane}")
    k.e("s_mov_b32 s28, 0x3f803f80")
    k.e(f"s_mov_b32 s29, {GELU_K}")
    k.e(f"s_mov_b32 s30, {GELU_C1}")
    k.e("s_waitcnt lgkmcnt(0)")
    stamp()

    def srd(sdst, spec):
        slot, wsoff, pitch, nbytes = spec
        if slot == "A_x":
            make_srd_from(k, sdst, 32, nbytes)
        elif slot == "out":
            make_srd_from(k, sdst, 36, nbytes)
        else:
            make_srd_from(k, sdst, 40, nbytes, add=wsoff)
    make_srd_from(k, 8, 40, WS_BYTES)
    srd(12, cfg["src"])
    srd(16, cfg["dst"])
    if cfg.get("res1"):
        srd(20, cfg["res1"])
    if cfg.get("res2"):
        srd(24, cfg["res2"])
    if cfg.get("stats") is not None:
        make_srd_from(k, 44, 40, S * 8, add=cfg["stats"])

    src_pitch = cfg["src"][2]
    if pro in ("ln", "ln2", "shift"):
        PB = 128 // LPR
    else:
        PB = 16 if (K * 2) % (LPR * 16) == 0 else 8
    chunk = LPR * PB
    ninstr = (K * 2) // chunk
    dwp = PB // 4
    nd = ninstr * dwp
    npass = 2 if halo else 1
    X = va.get(nd * npass, 4)
    v_r = va.get(); v_c = va.get(); v_soff = va.get(); v_lw = va.get()
    lg = {8: 3, 16: 4}[LPR]
    k.e(f"v_lshrrev_b32 v{v_r}, {lg}, v{v_lane}")
    k.e(f"v_and_b32 v{v_c}, {LPR - 1}, v{v_lane}")
    k.e(f"s_mul_i32 s42, s3, {RPW}")
    k.e(f"v_add_u32 v{v_r}, s42, v{v_r}")
    k.e(f"v_mul_u32_u24 v{v_lw}, {P}, v{v_r}")
    k.e(f"v_lshl_add_u32 v{v_lw}, v{v_c}, {PB.bit_length() - 1}, v{v_lw}")
    if LX:
        k.e(f"v_add_u32 v{v_lw}, {LX}, v{v_lw}")
    k.e(f"v_add_u32 v{v_soff}, s6, v{v_r}")
    if halo:
        k.e(f"v_subrev_u32 v{v_soff}, {halo}, v{v_soff}")
    k.e(f"s_movk_i32 s42, {src_pitch}")
    k.e(f"v_mul_lo_u32 v{v_soff}, v{v_soff}, s42")
    k.e(f"v_lshl_add_u32 v{v_soff}, v{v_c}, {PB.bit_length() - 1}, v{v_soff}")
    ldmn = {8: "buffer_load_dwordx2", 16: "buffer_load_dwordx4"}[PB]
    src_idx = []
    if pro == "shift":
        shifts = [1, -1, 2, -2]
        v_sh = va.get()
        for i in range(ninstr):
            b0 = i * chunk
            q0 = b0 // 224
            q1 = (b0 + chunk - 1) // 224
            d0 = (-shifts[q0] * src_pitch + b0) & 0xffffffff
            if q0 == q1:
                k.e(f"v_add_u32 v{v_sh}, 0x{d0:x}, v{v_soff}")
            else:
                d1 = (-shifts[q1] * src_pitch + b0) & 0xffffffff
                cb_ = ((q1 * 224) - b0) // PB
                k.e(f"v_cmp_gt_u32 vcc, {cb_}, v{v_c}")
                k.e(f"v_mov_b32 v{v_t0}, 0x{d1:x}")
                k.e(f"v_mov_b32 v{v_t1}, 0x{d0:x}")
                k.e(f"v_cndmask_b32 v{v_sh}, v{v_t0}, v{v_t1}, vcc")
                k.e(f"v_add_u32 v{v_sh}, v{v_sh}, v{v_soff}")
            src_idx.append(k.e(f"{ldmn} v[{X + i * dwp}:{X + i * dwp + dwp - 1}], v{v_sh}, s[12:15], 0 offen"))
    else:
        for i in range(ninstr):
            src_idx.append(k.e(f"{ldmn} v[{X + i * dwp}:{X + i * dwp + dwp - 1}], v{v_soff}, s[12:15], 0 offen offset:{i * chunk}"))
    if halo:
        v_soff2 = va.get()
        k.e(f"v_add_u32 v{v_soff2}, {TM * src_pitch}, v{v_soff}")
        for i in range(ninstr):
            src_idx.append(k.e(f"{ldmn} v[{X + nd + i * dwp}:{X + nd + i * dwp + dwp - 1}], v{v_soff2}, s[12:15], 0 offen offset:{i * chunk}"))

    waves = cfg["waves"]
    maxb = max(spec["b"] for spec in waves if spec)
    depth = cfg.get("depth", KS)
    k.e(f"v_lshlrev_b32 v{v_w}, 4, v{v_lane}")
    k.e("s_mov_b32 s43, 0")
    for w in range(8):
        if waves[w] and waves[w]["t0"]:
            k.e(f"s_cmp_eq_u32 s3, {w}")
            k.e(f"s_cselect_b32 s43, {waves[w]['t0']}, s43")
    k.e(f"s_mul_i32 s48, s5, {cfg['tiles_per_cb']}")
    k.e("s_add_u32 s48, s48, s43")
    k.e(f"s_mul_i32 s48, s48, {KS * 1024}")
    k.e(f"s_add_u32 s48, s48, 0x{cfg['wp_off']:x}")
    w_idx = {}
    def issue_w(j, s):
        slot = s % depth
        r = WF + (j * depth + slot) * 4
        off = (j * KS + s) * 1024
        hi_off = off & ~4095
        lo_off = off & 4095
        if hi_off:
            k.e(f"s_add_u32 s49, s48, 0x{hi_off:x}")
            sreg = "s49"
        else:
            sreg = "s48"
        w_idx[(j, s)] = k.e(f"buffer_load_dwordx4 v[{r}:{r + 3}], v{v_w}, s[8:11], {sreg} offen offset:{lo_off}")
    for s in range(min(depth, KS)):
        for j in range(maxb):
            issue_w(j, s)

    k.wait_vm(src_idx[ninstr - 1])
    stamp()
    T = va.get(10, 2)
    def stats_store(Tb, row_reg_lds):
        pass
    if has_ln:
        emit_stats(k, X, nd, LPR, T, pro)
        v_sa = va.get()
        k.e(f"v_lshlrev_b32 v{v_sa}, 3, v{v_r}")
        k.e(f"ds_write_b64 v{v_sa}, v[{T}:{T + 1}] offset:{LSTAT}") if T % 2 == 0 else None
        assert T % 2 == 0
        if cfg.get("stats") is not None:
            lab = k.newlabel("nost")
            k.e("s_cmp_lg_u32 s5, 0")
            k.e(f"s_cbranch_scc1 {lab}")
            v_gs = va.get()
            k.e(f"v_add_u32 v{v_gs}, s6, v{v_r}")
            k.e(f"v_lshlrev_b32 v{v_gs}, 3, v{v_gs}")
            k.e(f"buffer_store_dwordx2 v[{T + 2}:{T + 3}], v{v_gs}, s[44:47], 0 offen")
            k.label(lab)
            k.e("s_nop 1")
    wrmn = {8: "ds_write_b64", 16: "ds_write_b128"}[PB]
    for i in range(ninstr):
        k.e(f"{wrmn} v{v_lw}, v[{X + i * dwp}:{X + i * dwp + dwp - 1}] offset:{i * chunk}")
    if halo:
        nw2 = halo // RPW
        lab = k.newlabel("nohalo")
        k.e(f"s_cmp_ge_u32 s3, {nw2}")
        k.e(f"s_cbranch_scc1 {lab}")
        k.wait_vm(src_idx[-1])
        if has_ln:
            emit_stats(k, X + nd, nd, LPR, T, pro)
            k.e(f"ds_write_b64 v{v_sa}, v[{T}:{T + 1}] offset:{LSTAT + TM * 8}")
        for i in range(ninstr):
            k.e(f"{wrmn} v{v_lw}, v[{X + nd + i * dwp}:{X + nd + i * dwp + dwp - 1}] offset:{TM * P + i * chunk}")
        k.label(lab)
        k.e("s_nop 1")
    k.e("s_waitcnt lgkmcnt(0)")
    stamp()
    k.e("s_barrier")
    stamp()

    dst_pitch = cfg["dst"][2]
    k.e(f"v_mul_u32_u24 v{v_x}, {P}, v{v_m}")
    k.e(f"v_lshl_add_u32 v{v_x}, v{v_g}, 4, v{v_x}")
    if LX:
        k.e(f"v_add_u32 v{v_x}, {LX}, v{v_x}")
    v_x2 = None
    k.e(f"s_movk_i32 s42, {dst_pitch}")
    k.e(f"v_mul_lo_u32 v{v_eo}, v{v_m}, s42")
    k.e(f"v_lshl_add_u32 v{v_eo}, v{v_g}, 3, v{v_eo}")
    if has_ln:
        for r in range(4):
            k.e(f"v_mov_b32 v{ONES + r}, s28")
    k.e(f"v_lshlrev_b32 v{v_sm}, 3, v{v_m}")

    endlab = f"L_{name}_end"
    variants = {}
    for w, spec in enumerate(waves):
        key = None if spec is None else (spec["b"], spec["m0"], spec["a"])
        variants.setdefault(key, []).append(w)
    vlist = [(key, ws_) for key, ws_ in variants.items() if key is not None]
    labs = {key: k.newlabel("var") for key, _ in vlist}
    for key, ws_ in vlist:
        for w in ws_:
            k.e(f"s_cmp_eq_u32 s3, {w}")
            k.e(f"s_cbranch_scc1 {labs[key]}")
    k.e(f"s_branch {endlab}")
    maxv = va.n
    for key, ws_ in vlist:
        b, m0, a = key
        va2 = VAlloc(vbase)
        k.label(labs[key])
        k.e("s_nop 4")
        ACC = va2.get(a * b * 4, 4)
        XF = va2.get(2 * a * 4, 4)
        CS = va2.get(b * 4, 4) if has_ln else None
        for r in range(a * b * 4):
            k.e(f"v_mov_b32 v{ACC + r}, 0")
        if has_ln:
            for r in range(b * 4):
                k.e(f"v_mov_b32 v{CS + r}, 0")
        RES = None
        nres = {"store": 0, "gelu": 0, "res1": 1, "res2": 2, "resln": 1, "attn": 0}[cfg["epi"]]
        if nres:
            RES = va2.get(a * b * 2 * nres, 2)
        k.e(f"s_mul_i32 s50, s6, {dst_pitch}")
        k.e(f"s_mul_i32 s51, s5, {cfg['TNcols'] * 2}")
        k.e("s_add_u32 s50, s50, s51")
        k.e(f"s_lshl_b32 s51, s43, 5")
        k.e("s_add_u32 s50, s50, s51")
        res_idx = []
        def tile_soff(i):
            o = (m0 + i) * 16 * dst_pitch - halo * dst_pitch
            if o == 0:
                return "s50"
            k.e(f"s_add_u32 s52, s50, {o}")
            return "s52"
        if nres:
            for i in range(a):
                sr = tile_soff(i)
                for j in range(b):
                    for q in range(nres):
                        r = RES + ((i * b + j) * nres + q) * 2
                        srdn = (20, 24)[q]
                        res_idx.append(k.e(f"buffer_load_dwordx2 v[{r}:{r + 1}], v{v_eo}, s[{srdn}:{srdn + 3}], {sr} offen offset:{j * 32}"))
        RST = None
        if cfg["epi"] == "resln":
            RST = va2.get(a * 2, 2)
            v_rs = va2.get()
            k.e(f"v_add_u32 v{v_rs}, s6, v{v_m}")
            k.e(f"v_lshlrev_b32 v{v_rs}, 3, v{v_rs}")
            for i in range(a):
                res_idx.append(k.e(f"buffer_load_dwordx2 v[{RST + 2 * i}:{RST + 2 * i + 1}], v{v_rs}, s[44:47], 0 offen offset:{(m0 + i) * 128}"))

        def xoff(i, s):
            return (m0 + i) * 16 * P + 64 * s
        need_x2 = xoff(a - 1, KS - 1) > 65535
        if need_x2:
            v_x2 = va2.get()
            k.e(f"v_add_u32 v{v_x2}, {4 * 16 * P}, v{v_x}")
        def issue_x(s):
            buf = s % 2
            idx = None
            for i in range(a):
                r = XF + (buf * a + i) * 4
                o = xoff(i, s)
                if o > 65535 - 64:
                    idx = k.e(f"ds_read_b128 v[{r}:{r + 3}], v{v_x2} offset:{o - 4 * 16 * P}")
                else:
                    idx = k.e(f"ds_read_b128 v[{r}:{r + 3}], v{v_x} offset:{o}")
            return idx
        xi = issue_x(0)
        for s in range(KS):
            nxt = issue_x(s + 1) if s + 1 < KS else None
            k.wait_lg(xi)
            for j in range(b):
                if (j, s) in w_idx:
                    k.wait_vm(w_idx[(j, s)])
            buf = s % 2
            for j in range(b):
                wr = WF + (j * depth + (s % depth)) * 4
                for i in range(a):
                    xr = XF + (buf * a + i) * 4
                    ar = ACC + (i * b + j) * 4
                    k.e(f"v_mfma_f32_16x16x32_bf16 v[{ar}:{ar + 3}], v[{wr}:{wr + 3}], v[{xr}:{xr + 3}], v[{ar}:{ar + 3}]")
                if has_ln:
                    k.e(f"v_mfma_f32_16x16x32_bf16 v[{CS + 4 * j}:{CS + 4 * j + 3}], v[{wr}:{wr + 3}], v[{ONES}:{ONES + 3}], v[{CS + 4 * j}:{CS + 4 * j + 3}]")
            if s + depth < KS:
                for j in range(b):
                    issue_w(j, s + depth)
            xi = nxt
        stamp_save = stamp_n[0]
        stamp()
        TE = va2.get(8, 2)
        AB = None
        if has_ln:
            AB = va2.get(2 * a, 2)
            idx = None
            for i in range(a):
                idx = k.e(f"ds_read_b64 v[{AB + 2 * i}:{AB + 2 * i + 1}], v{v_sm} offset:{LSTAT + (m0 + i) * 128}")
            k.wait_lg(idx)
        if res_idx:
            k.wait_vm(res_idx[-1])
        if fused_attn:
            v_qa = va2.get()
            k.e(f"v_mul_u32_u24 v{v_qa}, {PQ}, v{v_m}")
            k.e(f"v_lshl_add_u32 v{v_qa}, v{v_g}, 3, v{v_qa}")
            k.e("s_lshr_b32 s52, s43, 2")
            k.e("s_lshl_b32 s52, s52, 7")
            k.e("s_and_b32 s53, s43, 3")
            k.e("s_lshl_b32 s53, s53, 5")
            k.e("s_add_u32 s52, s52, s53")
            k.e(f"v_add_u32 v{v_qa}, s52, v{v_qa}")
        for i in range(a):
            sr = tile_soff(i) if not fused_attn else None
            for j in range(b):
                ar = ACC + (i * b + j) * 4
                if has_ln:
                    for e_ in range(4):
                        k.e(f"v_mul_f32 v{TE + 2}, v{CS + 4 * j + e_}, v{AB + 2 * i + 1}")
                        k.e(f"v_fma_f32 v{ar + e_}, v{ar + e_}, v{AB + 2 * i}, -v{TE + 2}")
                p0, p1 = TE, TE + 1
                k.e(f"v_cvt_pk_bf16_f32 v{p0}, v{ar}, v{ar + 1}")
                k.e(f"v_cvt_pk_bf16_f32 v{p1}, v{ar + 2}, v{ar + 3}")
                if cfg["epi"] == "gelu":
                    emit_gelu_pair(k, p0, TE + 2)
                    emit_gelu_pair(k, p1, TE + 2)
                elif cfg["epi"] in ("res1", "res2", "resln"):
                    for q in range(nres):
                        r = RES + ((i * b + j) * nres + q) * 2
                        for hq, pk in enumerate((p0, p1)):
                            lo, hi, rl, rh = TE + 2, TE + 3, TE + 4, TE + 5
                            k.e(f"v_lshlrev_b32 v{rl}, 16, v{r + hq}")
                            k.e(f"v_and_b32 v{rh}, 0xffff0000, v{r + hq}")
                            if cfg["epi"] == "resln":
                                mbr, rvr = RST + 2 * i, RST + 2 * i + 1
                                k.e(f"v_sub_f32 v{rl}, v{rl}, v{mbr}")
                                k.e(f"v_sub_f32 v{rh}, v{rh}, v{mbr}")
                                k.e(f"v_cvt_pk_bf16_f32 v{lo}, v{rl}, v{rh}")
                                k.e(f"v_lshlrev_b32 v{rl}, 16, v{lo}")
                                k.e(f"v_and_b32 v{rh}, 0xffff0000, v{lo}")
                                k.e(f"v_mul_f32 v{rl}, v{rl}, v{rvr}")
                                k.e(f"v_mul_f32 v{rh}, v{rh}, v{rvr}")
                                k.e(f"v_cvt_pk_bf16_f32 v{lo}, v{rl}, v{rh}")
                                k.e(f"v_lshlrev_b32 v{rl}, 16, v{lo}")
                                k.e(f"v_and_b32 v{rh}, 0xffff0000, v{lo}")
                            k.e(f"v_lshlrev_b32 v{lo}, 16, v{pk}")
                            k.e(f"v_and_b32 v{hi}, 0xffff0000, v{pk}")
                            k.e(f"v_add_f32 v{lo}, v{lo}, v{rl}")
                            k.e(f"v_add_f32 v{hi}, v{hi}, v{rh}")
                            k.e(f"v_cvt_pk_bf16_f32 v{pk}, v{lo}, v{hi}")
                if fused_attn:
                    k.e(f"ds_write_b64 v{v_qa}, v[{p0}:{p1}] offset:{LQKV + (m0 + i) * 16 * PQ + j * 32}")
                else:
                    k.e(f"buffer_store_dwordx2 v[{p0}:{p1}], v{v_eo}, s[16:19], {sr} offen offset:{j * 32}")
        if PROF:
            k.e("s_waitcnt vmcnt(0) lgkmcnt(0)")
        stamp()
        k.e(f"s_branch {endlab}")
        stamp_n[0] = stamp_save
        maxv = max(maxv, va2.n)
    k.label(endlab)
    k.e("s_nop 1")
    if fused_attn:
        k.e("s_waitcnt lgkmcnt(0)")
        k.e("s_barrier")
        va3 = VAlloc(vbase)
        emit_attention(k, va3, LQKV, "s6", "s5", 16, ("s52", "s53", "s[54:55]"))
        maxv = max(maxv, va3.n)
    if PROF:
        lab = k.newlabel("noprof")
        k.e(f"s_cmp_lg_u32 s2, {cfg.get('prof_wg', 0)}")
        k.e(f"s_cbranch_scc1 {lab}")
        k.e("s_cmp_lg_u32 s3, 0")
        k.e(f"s_cbranch_scc1 {lab}")
        k.e(f"s_load_dwordx2 s[66:67], s[0:1], {ARG['dbg']}")
        k.e("s_waitcnt lgkmcnt(0)")
        make_srd_from(k, 60, 66, 256)
        k.e("v_mov_b32 v1, 0")
        for i in range(8):
            k.e(f"v_mov_b32 v2, s{70 + 2 * i}")
            k.e(f"buffer_store_dword v2, v1, s[60:63], 0 offen offset:{4 * i}")
        k.label(lab)
    k.label(done)
    k.e("s_endpgm")
    lds = LX + ROWS * P
    return k, dict(grid=nwg, block=512, lds=lds, nvgpr=maxv, nsgpr=96 if PROF else 64)


def phase_cfgs2(L):
    xin = ("A_x", 0, D * 2, S * D * 2) if L == 0 else (None, WS.XB0, D * 2, S * D * 2)
    g = lambda n: getattr(WS, f"{n}{L}")
    buf = lambda n, cols=D: (None, g(n), cols * 2, S * cols * 2)
    cfgs = []
    qw = [dict(b=2, t0=4, m0=0, a=5), dict(b=2, t0=6, m0=0, a=5), dict(b=2, t0=8, m0=0, a=5), dict(b=2, t0=10, m0=0, a=5),
          dict(b=1, t0=0, m0=1, a=4), dict(b=1, t0=1, m0=1, a=4), dict(b=1, t0=2, m0=1, a=4), dict(b=1, t0=3, m0=1, a=4)]
    cfgs.append(("qkv", dict(K=448, TM=64, halo=16, NCB=8, tiles_per_cb=12, wp_off=WS.WP_QKV, waves=qw,
                             pro="ln", src=xin, epi="attn", attn=True, dst=buf("O"), TNcols=192)))
    cfgs.append(("wo", dict(K=448, TM=32, NCB=4, tiles_per_cb=7, wp_off=WS.WP_WO, waves=waves_even(7, 2),
                            pro="plain", src=buf("O"), epi="res1", res1=xin, dst=buf("XA"), TNcols=112)))
    cfgs.append(("w1", dict(K=448, TM=32, NCB=4, tiles_per_cb=7, wp_off=WS.WP_W1, waves=waves_even(7, 2),
                            pro="ln2", src=buf("XA"), stats=getattr(WS, f"STATS{L}"), epi="gelu", dst=buf("H"), TNcols=112)))
    cfgs.append(("w2", dict(K=448, TM=32, NCB=4, tiles_per_cb=7, wp_off=WS.WP_W2, waves=waves_even(7, 2),
                            pro="shift", src=buf("H"), epi="resln", res1=buf("XA"), stats=getattr(WS, f"STATS{L}"),
                            dst=buf("X1"), TNcols=112)))
    cfgs.append(("w3", dict(K=448, TM=64, NCB=7, tiles_per_cb=16, wp_off=WS.WP_W3, waves=waves_even(16, 4),
                            pro="ln", src=buf("X1"), epi="gelu", dst=buf("G", F), TNcols=256)))
    dst6 = buf("XB") if L == 0 else ("out", 0, D * 2, S * D * 2)
    cfgs.append(("w4", dict(K=1792, TM=32, NCB=4, tiles_per_cb=7, wp_off=WS.WP_W4, waves=waves_even(7, 2),
                            pro="plain", src=buf("G", F), epi="res2", res1=buf("X1"), res2=buf("XA"), dst=dst6,
                            TNcols=112, depth=16)))
    return cfgs

def write_file(kernels, path):
    hdr = open(f"cdna_kernels/{NAME}.s.ref").read().split("; Override launch")[0]
    out = hdr
    for (k, meta) in kernels:
        out += f"; @launch kernel={k.name} grid=({meta['grid']},1,1) block=({meta['block']},1,1) lds={meta['lds']}\n"
    out += '.amdgcn_target "amdgcn-amd-amdhsa--gfx950"\n.text\n'
    descs = ""
    seen = set()
    for (k, meta) in kernels:
        if k.name in seen:
            continue
        seen.add(k.name)
        nv = meta.get("nvgpr", 256)
        nv8 = (nv + 7) // 8 * 8
        txt, desc = kernel_text(k, nvgpr=nv8, nsgpr=meta.get("nsgpr", 102), accum=min(256, (nv8 + 3) // 4 * 4))
        out += txt
        descs += desc
    out += '.section .rodata,"a"\n' + descs
    open(path, "w").write(out)


def build_list(prof=None):
    ks = [gen_prep()]
    for L in (0, 1):
        for (nm, cfg) in phase_cfgs2(L):
            if prof and L == 0:
                cfg["prof"] = True
                cfg["prof_wg"] = 40
            ks.append(gen_gemm2(f"{nm}{L}_kernel", cfg))
    return ks
    for L in (0, 1):
        for (nm, cfg) in phase_cfgs(L):
            ks.append(gen_gemm(f"{nm}{L}_kernel", cfg))
            if nm == "qkv":
                ks.append(gen_attn(f"attn{L}_kernel", L))
    return ks


if __name__ == "__main__":
    import os
    ks = build_list(prof=os.environ.get('PROF'))
    out = sys.argv[1] if len(sys.argv) > 1 else "dev.s"
    write_file(ks, out)
    for k, meta in ks:
        print(k.name, meta)
    regions = {}
    for L in (0, 1):
        a, b = f"L{2*L}_", f"L{2*L+1}_"
        regions[a + "o"] = [getattr(WS, f"O{L}"), S, D]
        regions[a + "xa"] = [getattr(WS, f"XA{L}"), S, D]
        regions[b + "y"] = [getattr(WS, f"Y{L}"), S, D]
        regions[b + "h"] = [getattr(WS, f"H{L}"), S, D]
        regions[b + "x1"] = [getattr(WS, f"X1{L}"), S, D]
        regions[b + "g"] = [getattr(WS, f"G{L}"), S, F]
        if L == 0:
            regions[b + "xb"] = [getattr(WS, f"XB{L}"), S, D]
        regions[f"qkvp{L}"] = [getattr(WS, f"QKV{L}"), S, 1536]
    json.dump({"regions": regions, "nlaunch": None}, open("spec.json", "w"))
    print("ws bytes used:", _off[0])
```

```python
import sys, json
sys.path.insert(0, "gen")
from asmlib import Kern, kernel_text, f32hex

NAME = "interleave_layers__sliding_local_dilated__mixer_s_mlp__prompt"
S, D, F = 2048, 448, 1792

ARG = dict(A_x=0, A_wqkv=8, A_wo=16, B_x=24, B_w1=32, B_w2=40, B_w3=48, B_w4=56, out=64, dbg=72, ws=80)
WS_BYTES = 268435456

class WS:
    pass

_off = [0]
def ws_alloc(nbytes):
    o = _off[0]
    _off[0] = (o + nbytes + 4095) // 4096 * 4096
    return o

WS.WP_QKV = ws_alloc(96 * 14 * 1024)
WS.WP_WO = ws_alloc(28 * 14 * 1024)
WS.WP_W1 = ws_alloc(28 * 14 * 1024)
WS.WP_W2 = ws_alloc(28 * 14 * 1024)
WS.WP_W3 = ws_alloc(112 * 14 * 1024)
WS.WP_W4 = ws_alloc(28 * 56 * 1024)
for L in (0, 1):
    setattr(WS, f"QKV{L}", ws_alloc(S * 1536 * 2))
    for n in ("O", "XA", "Y", "H", "X1", "XB"):
        setattr(WS, f"{n}{L}", ws_alloc(S * D * 2))
    setattr(WS, f"G{L}", ws_alloc(S * F * 2))

def magic_div(d, maxn):
    for sh in range(0, 8):
        m = ((1 << (32 + sh)) + d - 1) // d
        if m >= (1 << 32):
            continue
        ok = all(((n * m) >> (32 + sh)) == n // d for n in range(maxn))
        if ok:
            return m, sh
    raise ValueError


def s_divmod(k, sq, sr, sn, d, maxn, stmp):
    m, sh = magic_div(d, maxn)
    k.e(f"s_mul_hi_u32 {sq}, {sn}, 0x{m:x}")
    if sh:
        k.e(f"s_lshr_b32 {sq}, {sq}, {sh}")
    k.e(f"s_mul_i32 {stmp}, {sq}, {d}")
    k.e(f"s_sub_u32 {sr}, {sn}, {stmp}")


def load_srd(k, sdst, argoff, nbytes, add=0, stmp=None):
    raise NotImplementedError


def make_srd_from(k, sdst, sptr, nbytes, add=0):
    if add:
        k.e(f"s_add_u32 s{sdst}, s{sptr}, 0x{add:x}")
        k.e(f"s_addc_u32 s{sdst+1}, s{sptr+1}, 0")
    else:
        k.e(f"s_mov_b32 s{sdst}, s{sptr}")
        k.e(f"s_mov_b32 s{sdst+1}, s{sptr+1}")
    k.e(f"s_and_b32 s{sdst+1}, s{sdst+1}, 0xffff")
    k.e(f"s_mov_b32 s{sdst+2}, 0x{nbytes:x}")
    k.e(f"s_mov_b32 s{sdst+3}, 0x00020000")


PREP_MATS = [
    ("A_wqkv", 448, 1344, WS.WP_QKV, 96, "qkv"),
    ("A_wo", 448, 448, WS.WP_WO, 28, "plain"),
    ("B_w1", 448, 448, WS.WP_W1, 28, "plain"),
    ("B_w2", 448, 448, WS.WP_W2, 28, "plain"),
    ("B_w3", 448, 1792, WS.WP_W3, 112, "plain"),
    ("B_w4", 1792, 448, WS.WP_W4, 28, "plain"),
]
PREP_NBLK = sum(nt * (K // 32) for (_, K, N, _, nt, _) in PREP_MATS)


def gen_prep():
    BPW = 4
    k = Kern("prep_kernel")
    nwaves = (PREP_NBLK + BPW - 1) // BPW
    k.e("v_lshrrev_b32 v1, 6, v0")
    k.e("s_nop 0")
    k.e("v_readfirstlane_b32 s3, v1")
    k.e("s_lshl_b32 s4, s2, 2")
    k.e("s_add_u32 s4, s4, s3")
    k.e(f"s_cmp_ge_u32 s4, {nwaves}")
    k.e("s_cbranch_scc1 L_prep_done")
    k.e("s_load_dwordx4 s[8:11], s[0:1], 0")
    k.e("s_load_dwordx4 s[12:15], s[0:1], 16")
    k.e("s_load_dwordx4 s[16:19], s[0:1], 32")
    k.e("s_load_dwordx4 s[20:23], s[0:1], 48")
    k.e(f"s_load_dwordx2 s[24:25], s[0:1], {ARG['ws']}")
    k.e("v_and_b32 v2, 63, v0")
    k.e("v_lshrrev_b32 v3, 4, v2")
    k.e("v_and_b32 v4, 15, v2")
    k.e("v_lshlrev_b32 v5, 4, v2")
    k.e("s_lshl_b32 s4, s4, 2")
    k.e("s_waitcnt lgkmcnt(0)")
    make_srd_from(k, 28, 24, WS_BYTES)
    ptr = {"A_wqkv": 10, "A_wo": 12, "B_w1": 16, "B_w2": 18, "B_w3": 20, "B_w4": 22}
    for bi in range(BPW):
        LD = 16 + 8 * bi
        SD = 60 + bi
        k.e(f"s_add_u32 s48, s4, {bi}")
        base = 0
        ldone = f"L_prep_b{bi}_done"
        for (arg, K, N, wsoff, ntiles, kind) in PREP_MATS:
            nb = ntiles * (K // 32)
            KS = K // 32
            lab_next = f"L_prep_n_{arg}_{bi}"
            k.e(f"s_cmp_ge_u32 s48, {base + nb}")
            k.e(f"s_cbranch_scc1 {lab_next}")
            k.e(f"s_sub_u32 s5, s48, {base}")
            s_divmod(k, "s6", "s7", "s5", KS, nb, "s32")
            if kind == "plain":
                k.e("s_lshl_b32 s33, s6, 4")
            else:
                s_divmod(k, "s34", "s35", "s6", 12, 96, "s32")
                k.e("s_lshr_b32 s36, s35, 2")
                k.e("s_and_b32 s37, s35, 3")
                k.e("s_mul_i32 s33, s36, 448")
                k.e("s_mul_i32 s32, s34, 56")
                k.e("s_add_u32 s33, s33, s32")
                k.e("s_lshl_b32 s32, s37, 4")
                k.e("s_add_u32 s33, s33, s32")
            make_srd_from(k, 40, ptr[arg], K * N * 2)
            k.e(f"s_mul_i32 s44, s7, {32 * N}")
            k.e("s_add_u32 s44, s44, s33")
            k.e("s_lshl_b32 s44, s44, 1")
            k.e(f"s_movk_i32 s45, {8 * N}")
            k.e("v_mul_lo_u32 v6, v3, s45")
            k.e("v_add_lshl_u32 v6, v6, v4, 1")
            for j in range(8):
                k.e(f"s_add_u32 s46, s44, {j * N * 2}")
                k.e(f"buffer_load_ushort v{LD + j}, v6, s[40:43], s46 offen")
            k.e(f"s_lshl_b32 s{SD}, s5, 10")
            k.e(f"s_add_u32 s{SD}, s{SD}, 0x{wsoff:x}")
            k.e(f"s_branch {ldone}")
            k.label(lab_next)
            base += nb
        k.e(f"s_mov_b32 s{SD}, 0x{WS_BYTES:x}")
        k.label(ldone)
        k.e("s_nop 0")
    k.e("s_waitcnt vmcnt(0)")
    for bi in range(BPW):
        LD = 16 + 8 * bi
        for j in range(4):
            k.e(f"v_lshl_or_b32 v{8 + j}, v{LD + 1 + 2 * j}, 16, v{LD + 2 * j}")
        k.e(f"buffer_store_dwordx4 v[8:11], v5, s[28:31], s{60 + bi} offen")
        k.e("s_nop 1")
    k.label("L_prep_done")
    k.e("s_endpgm")
    grid = (nwaves + 3) // 4
    return k, dict(grid=grid, block=256, lds=0, nvgpr=48, nsgpr=72)


INV448 = f32hex(1.0 / 448.0)
EPS = f32hex(1e-5)
GELU_C1 = f32hex(-2.0 * 0.7978845608028654 * 1.4426950408889634)
GELU_K = f32hex(0.044715)

class VAlloc:
    def __init__(self, start=1, limit=256):
        self.n = start
        self.limit = limit
    def get(self, cnt=1, align=1):
        self.n = (self.n + align - 1) // align * align
        b = self.n
        self.n += cnt
        assert self.n <= self.limit, f"out of VGPRs {self.n}"
        return b


def emit_bf16_round(k, dst_f32, src_f32, tmp):
    k.e(f"v_cvt_pk_bf16_f32 v{tmp}, v{src_f32}, v{src_f32}")
    k.e(f"v_lshlrev_b32 v{dst_f32}, 16, v{tmp}")


def emit_row_reduce(k, vsum, vt, lpr):
    k.e(f"v_add_f32_dpp v{vt}, v{vsum}, v{vsum} quad_perm:[1,0,3,2] row_mask:0xf bank_mask:0xf")
    k.e(f"v_add_f32_dpp v{vsum}, v{vt}, v{vt} quad_perm:[2,3,0,1] row_mask:0xf bank_mask:0xf")
    k.e(f"v_add_f32_dpp v{vt}, v{vsum}, v{vsum} row_half_mirror row_mask:0xf bank_mask:0xf")
    if lpr == 16:
        k.e(f"v_add_f32_dpp v{vsum}, v{vt}, v{vt} row_mirror row_mask:0xf bank_mask:0xf")
    else:
        k.e(f"v_mov_b32 v{vsum}, v{vt}")


def emit_ln(k, X, nd, lpr, T):
    a0, a1, a2, a3, t0, mf, dl, lo, hi, s2a, s2b, rv = [T + i for i in range(12)]
    for i, r in enumerate((a0, a1, a2, a3)):
        k.e(f"v_mov_b32 v{r}, 0")
    for d in range(nd):
        acc = (a0, a1, a2, a3)[d % 4]
        k.e(f"v_dot2_f32_bf16 v{acc}, v{X + d}, s28, v{acc}")
    k.e(f"v_add_f32 v{a0}, v{a0}, v{a1}")
    k.e(f"v_add_f32 v{a2}, v{a2}, v{a3}")
    k.e(f"v_add_f32 v{a0}, v{a0}, v{a2}")
    emit_row_reduce(k, a0, t0, lpr)
    k.e(f"v_mul_f32 v{a0}, {INV448}, v{a0}")
    emit_bf16_round(k, mf, a0, t0)
    k.e(f"v_sub_f32 v{dl}, v{a0}, v{mf}")
    k.e(f"v_mov_b32 v{s2a}, 0")
    k.e(f"v_mov_b32 v{s2b}, 0")
    for d in range(nd):
        k.e(f"v_lshlrev_b32 v{lo}, 16, v{X + d}")
        k.e(f"v_and_b32 v{hi}, 0xffff0000, v{X + d}")
        k.e(f"v_sub_f32 v{lo}, v{lo}, v{mf}")
        k.e(f"v_sub_f32 v{hi}, v{hi}, v{mf}")
        k.e(f"v_fmac_f32 v{s2a}, v{lo}, v{lo}")
        k.e(f"v_fmac_f32 v{s2b}, v{hi}, v{hi}")
        k.e(f"v_cvt_pk_bf16_f32 v{X + d}, v{lo}, v{hi}")
    k.e(f"v_add_f32 v{s2a}, v{s2a}, v{s2b}")
    emit_row_reduce(k, s2a, t0, lpr)
    k.e(f"v_mul_f32 v{s2a}, {INV448}, v{s2a}")
    k.e(f"v_fma_f32 v{s2a}, -v{dl}, v{dl}, v{s2a}")
    emit_bf16_round(k, s2a, s2a, t0)
    k.e(f"v_add_f32 v{s2a}, {EPS}, v{s2a}")
    emit_bf16_round(k, s2a, s2a, t0)
    k.e(f"v_sqrt_f32 v{s2a}, v{s2a}")
    emit_bf16_round(k, s2a, s2a, t0)
    k.e(f"v_rcp_f32 v{rv}, v{s2a}")
    k.e(f"v_fma_f32 v{t0}, -v{s2a}, v{rv}, 2.0")
    k.e(f"v_mul_f32 v{rv}, v{rv}, v{t0}")
    for d in range(nd):
        k.e(f"v_lshlrev_b32 v{lo}, 16, v{X + d}")
        k.e(f"v_and_b32 v{hi}, 0xffff0000, v{X + d}")
        k.e(f"v_mul_f32 v{lo}, v{lo}, v{rv}")
        k.e(f"v_mul_f32 v{hi}, v{hi}, v{rv}")
        k.e(f"v_cvt_pk_bf16_f32 v{X + d}, v{lo}, v{hi}")


def emit_gelu_pair(k, pk, T):
    x0, x1, t0, t1 = T, T + 1, T + 2, T + 3
    k.e(f"v_lshlrev_b32 v{x0}, 16, v{pk}")
    k.e(f"v_and_b32 v{x1}, 0xffff0000, v{pk}")
    for (x, t) in ((x0, t0), (x1, t1)):
        k.e(f"v_mul_f32 v{t}, v{x}, v{x}")
    for (x, t) in ((x0, t0), (x1, t1)):
        k.e(f"v_fma_f32 v{t}, v{t}, s29, 1.0")
    for (x, t) in ((x0, t0), (x1, t1)):
        k.e(f"v_mul_f32 v{t}, v{t}, v{x}")
    for (x, t) in ((x0, t0), (x1, t1)):
        k.e(f"v_mul_f32 v{t}, s30, v{t}")
    for (x, t) in ((x0, t0), (x1, t1)):
        k.e(f"v_exp_f32 v{t}, v{t}")
    for (x, t) in ((x0, t0), (x1, t1)):
        k.e(f"v_add_f32 v{t}, 1.0, v{t}")
    for (x, t) in ((x0, t0), (x1, t1)):
        k.e(f"v_rcp_f32 v{t}, v{t}")
    for (x, t) in ((x0, t0), (x1, t1)):
        k.e(f"v_mul_f32 v{x}, v{x}, v{t}")
    k.e(f"v_cvt_pk_bf16_f32 v{pk}, v{x0}, v{x1}")


def gen_gemm(name, cfg):
    K = cfg["K"]; KS = K // 32; TM = cfg["TM"]; NCB = cfg["NCB"]
    NRB = S // TM
    P = K * 2 + 32
    LPR = 512 // TM
    RPW = 64 // LPR
    k = Kern(name)
    nwg = NRB * NCB
    done = f"L_{name}_done"
    PROF = cfg.get("prof", False)
    stamp_n = [0]
    def stamp():
        if PROF:
            i = stamp_n[0]
            k.e(f"s_memtime s[{70 + 2 * i}:{71 + 2 * i}]")
            stamp_n[0] += 1
    k.e(f"s_cmp_ge_u32 s2, {nwg}")
    k.e(f"s_cbranch_scc1 {done}")
    stamp()
    k.e("s_load_dwordx4 s[32:35], s[0:1], 0")
    k.e(f"s_load_dwordx4 s[36:39], s[0:1], {ARG['out']}")
    k.e(f"s_load_dwordx2 s[40:41], s[0:1], {ARG['ws']}")
    va = VAlloc(1)
    v_lane = va.get(); v_m = va.get(); v_g = va.get(); v_t0 = va.get(); v_t1 = va.get()
    k.e(f"v_lshrrev_b32 v{v_t0}, 6, v0")
    k.e(f"v_and_b32 v{v_lane}, 63, v0")
    k.e(f"v_readfirstlane_b32 s3, v{v_t0}")
    s_divmod(k, "s4", "s5", "s2", NCB, nwg, "s42")
    k.e(f"s_mul_i32 s6, s4, {TM}")
    k.e(f"v_and_b32 v{v_m}, 15, v{v_lane}")
    k.e(f"v_lshrrev_b32 v{v_g}, 4, v{v_lane}")
    k.e("s_mov_b32 s28, 0x3f803f80")
    k.e(f"s_mov_b32 s29, {GELU_K}")
    k.e(f"s_mov_b32 s30, {GELU_C1}")
    k.e("s_waitcnt lgkmcnt(0)")
    stamp()

    def srd(sdst, spec):
        slot, wsoff, pitch, nbytes = spec
        if slot == "A_x":
            make_srd_from(k, sdst, 32, nbytes)
        elif slot == "out":
            make_srd_from(k, sdst, 36, nbytes)
        else:
            make_srd_from(k, sdst, 40, nbytes, add=wsoff)
    make_srd_from(k, 8, 40, WS_BYTES)
    srd(12, cfg["src"])
    srd(16, cfg["dst"])
    if cfg.get("res1"):
        srd(20, cfg["res1"])
    if cfg.get("res2"):
        srd(24, cfg["res2"])
    if cfg.get("ystore") is not None:
        make_srd_from(k, 44, 40, S * D * 2, add=cfg["ystore"])

    src_pitch = cfg["src"][2]
    pro = cfg["pro"]
    if pro in ("ln", "ln2", "shift"):
        PB = 128 // LPR
    else:
        PB = 16 if (K * 2) % (LPR * 16) == 0 else 8
    chunk = LPR * PB
    ninstr = (K * 2) // chunk
    dwp = PB // 4
    nd = ninstr * dwp
    X = va.get(nd, 4)
    v_r = va.get(); v_c = va.get(); v_soff = va.get(); v_lw = va.get()
    lg = {8: 3, 16: 4}[LPR]
    k.e(f"v_lshrrev_b32 v{v_r}, {lg}, v{v_lane}")
    k.e(f"v_and_b32 v{v_c}, {LPR - 1}, v{v_lane}")
    k.e(f"s_mul_i32 s42, s3, {RPW}")
    k.e(f"v_add_u32 v{v_r}, s42, v{v_r}")
    k.e(f"v_mul_u32_u24 v{v_lw}, {P}, v{v_r}")
    k.e(f"v_lshl_add_u32 v{v_lw}, v{v_c}, {PB.bit_length() - 1}, v{v_lw}")
    k.e(f"v_add_u32 v{v_soff}, s6, v{v_r}")
    k.e(f"s_movk_i32 s42, {src_pitch}")
    k.e(f"v_mul_lo_u32 v{v_soff}, v{v_soff}, s42")
    k.e(f"v_lshl_add_u32 v{v_soff}, v{v_c}, {PB.bit_length() - 1}, v{v_soff}")
    ldmn = {8: "buffer_load_dwordx2", 16: "buffer_load_dwordx4"}[PB]
    src_idx = []
    if pro == "shift":
        shifts = [1, -1, 2, -2]
        v_sh = va.get()
        for i in range(ninstr):
            b0 = i * chunk
            q0 = b0 // 224
            q1 = (b0 + chunk - 1) // 224
            d0 = (-shifts[q0] * src_pitch + b0) & 0xffffffff
            if q0 == q1:
                k.e(f"v_add_u32 v{v_sh}, 0x{d0:x}, v{v_soff}")
            else:
                d1 = (-shifts[q1] * src_pitch + b0) & 0xffffffff
                cb_ = ((q1 * 224) - b0) // PB
                k.e(f"v_cmp_gt_u32 vcc, {cb_}, v{v_c}")
                k.e(f"v_mov_b32 v{v_t0}, 0x{d1:x}")
                k.e(f"v_mov_b32 v{v_t1}, 0x{d0:x}")
                k.e(f"v_cndmask_b32 v{v_sh}, v{v_t0}, v{v_t1}, vcc")
                k.e(f"v_add_u32 v{v_sh}, v{v_sh}, v{v_soff}")
            src_idx.append(k.e(f"{ldmn} v[{X + i * dwp}:{X + i * dwp + dwp - 1}], v{v_sh}, s[12:15], 0 offen"))
    else:
        for i in range(ninstr):
            src_idx.append(k.e(f"{ldmn} v[{X + i * dwp}:{X + i * dwp + dwp - 1}], v{v_soff}, s[12:15], 0 offen offset:{i * chunk}"))

    waves = cfg["waves"]
    variants = {}
    for w, spec in enumerate(waves):
        key = None if spec is None else (spec["b"], spec["m0"], spec["a"])
        variants.setdefault(key, []).append(w)

    maxb = max(spec["b"] for spec in waves if spec)
    depth = cfg.get("depth", KS)
    WF = va.get(maxb * depth * 4, 4)
    v_w = va.get()
    k.e(f"v_lshlrev_b32 v{v_w}, 4, v{v_lane}")
    k.e("s_mov_b32 s43, 0")
    firsts = [spec["t0"] if spec else 0 for spec in waves]
    for w in range(8):
        if firsts[w]:
            k.e(f"s_cmp_eq_u32 s3, {w}")
            k.e(f"s_cselect_b32 s43, {firsts[w]}, s43")
    k.e(f"s_mul_i32 s48, s5, {cfg['tiles_per_cb']}")
    k.e("s_add_u32 s48, s48, s43")
    k.e(f"s_mul_i32 s48, s48, {KS * 1024}")
    k.e(f"s_add_u32 s48, s48, 0x{cfg['wp_off']:x}")

    w_idx = {}
    def issue_w(j, s):
        slot = s % depth
        r = WF + (j * depth + slot) * 4
        off = (j * KS + s) * 1024
        hi_off = off & ~4095
        lo_off = off & 4095
        if hi_off:
            k.e(f"s_add_u32 s49, s48, 0x{hi_off:x}")
            sreg = "s49"
        else:
            sreg = "s48"
        w_idx[(j, s)] = k.e(f"buffer_load_dwordx4 v[{r}:{r + 3}], v{v_w}, s[8:11], {sreg} offen offset:{lo_off}")

    for s in range(min(depth, KS)):
        for j in range(maxb):
            issue_w(j, s)

    k.wait_vm(src_idx[-1])
    stamp()
    T = va.get(12)
    if pro in ("ln", "ln2"):
        emit_ln(k, X, nd, LPR, T)
    if pro == "ln2":
        if cfg.get("ystore") is not None:
            lab = k.newlabel("noy")
            k.e("s_cmp_lg_u32 s5, 0")
            k.e(f"s_cbranch_scc1 {lab}")
            stmn = {8: "buffer_store_dwordx2", 16: "buffer_store_dwordx4"}[PB]
            for i in range(ninstr):
                k.e(f"{stmn} v[{X + i * dwp}:{X + i * dwp + dwp - 1}], v{v_soff}, s[44:47], 0 offen offset:{i * chunk}")
            k.label(lab)
            k.e("s_nop 1")
        emit_ln(k, X, nd, LPR, T)
    wrmn = {8: "ds_write_b64", 16: "ds_write_b128"}[PB]
    for i in range(ninstr):
        k.e(f"{wrmn} v{v_lw}, v[{X + i * dwp}:{X + i * dwp + dwp - 1}] offset:{i * chunk}")
    k.e("s_waitcnt lgkmcnt(0)")
    stamp()
    k.e("s_barrier")
    stamp()

    dst_pitch = cfg["dst"][2]
    v_x = va.get()
    k.e(f"v_mul_u32_u24 v{v_x}, {P}, v{v_m}")
    k.e(f"v_lshl_add_u32 v{v_x}, v{v_g}, 4, v{v_x}")
    v_eo = va.get()
    k.e(f"s_movk_i32 s42, {dst_pitch}")
    k.e(f"v_mul_lo_u32 v{v_eo}, v{v_m}, s42")
    k.e(f"v_lshl_add_u32 v{v_eo}, v{v_g}, 3, v{v_eo}")

    vbase_after_common = va.n
    endlab = f"L_{name}_end"
    vlist = [(key, ws_) for key, ws_ in variants.items() if key is not None]
    for vi, (key, ws_) in enumerate(vlist):
        pass
    labs = {key: k.newlabel("var") for key, _ in vlist}
    for key, ws_ in vlist:
        for w in ws_:
            k.e(f"s_cmp_eq_u32 s3, {w}")
            k.e(f"s_cbranch_scc1 {labs[key]}")
    k.e(f"s_branch {endlab}")
    maxv = va.n
    for key, ws_ in vlist:
        b, m0, a = key
        va2 = VAlloc(vbase_after_common)
        k.label(labs[key])
        k.e("s_nop 4")
        ACC = va2.get(a * b * 4, 4)
        XF = va2.get(2 * a * 4, 4)
        for r in range(a * b * 4):
            k.e(f"v_mov_b32 v{ACC + r}, 0")
        RES = None
        nres = {"store": 0, "gelu": 0, "res1": 1, "res2": 2}[cfg["epi"]]
        if nres:
            RES = va2.get(a * b * 2 * nres, 2)
        k.e(f"s_mul_i32 s50, s6, {dst_pitch}")
        k.e(f"s_mul_i32 s51, s5, {cfg['TNcols'] * 2}")
        k.e("s_add_u32 s50, s50, s51")
        k.e(f"s_lshl_b32 s51, s43, 5")
        k.e("s_add_u32 s50, s50, s51")
        res_idx = []
        def tile_soff(i):
            o = (m0 + i) * 16 * dst_pitch
            if o == 0:
                return "s50"
            k.e(f"s_add_u32 s52, s50, {o}")
            return "s52"
        if nres:
            for i in range(a):
                sr = tile_soff(i)
                for j in range(b):
                    for q in range(nres):
                        r = RES + ((i * b + j) * nres + q) * 2
                        srdn = (20, 24)[q]
                        res_idx.append(k.e(f"buffer_load_dwordx2 v[{r}:{r + 1}], v{v_eo}, s[{srdn}:{srdn + 3}], {sr} offen offset:{j * 32}"))

        def issue_x(s):
            buf = s % 2
            idx = None
            for i in range(a):
                r = XF + (buf * a + i) * 4
                idx = k.e(f"ds_read_b128 v[{r}:{r + 3}], v{v_x} offset:{(m0 + i) * 16 * P + 64 * s}")
            return idx
        xi = issue_x(0)
        for s in range(KS):
            nxt = issue_x(s + 1) if s + 1 < KS else None
            k.wait_lg(xi)
            for j in range(b):
                if (j, s) in w_idx:
                    k.wait_vm(w_idx[(j, s)])
            buf = s % 2
            for j in range(b):
                wr = WF + (j * depth + (s % depth)) * 4
                for i in range(a):
                    xr = XF + (buf * a + i) * 4
                    ar = ACC + (i * b + j) * 4
                    k.e(f"v_mfma_f32_16x16x32_bf16 v[{ar}:{ar + 3}], v[{wr}:{wr + 3}], v[{xr}:{xr + 3}], v[{ar}:{ar + 3}]")
            if s + depth < KS:
                for j in range(b):
                    issue_w(j, s + depth)
            xi = nxt
        stamp_save = stamp_n[0]
        stamp()
        TE = va2.get(8)
        if res_idx:
            k.wait_vm(res_idx[-1])
        for i in range(a):
            sr = tile_soff(i)
            for j in range(b):
                ar = ACC + (i * b + j) * 4
                p0, p1 = TE, TE + 1
                k.e(f"v_cvt_pk_bf16_f32 v{p0}, v{ar}, v{ar + 1}")
                k.e(f"v_cvt_pk_bf16_f32 v{p1}, v{ar + 2}, v{ar + 3}")
                if cfg["epi"] == "gelu":
                    emit_gelu_pair(k, p0, TE + 2)
                    emit_gelu_pair(k, p1, TE + 2)
                elif nres:
                    for q in range(nres):
                        r = RES + ((i * b + j) * nres + q) * 2
                        for hq, pk in enumerate((p0, p1)):
                            lo, hi, rl, rh = TE + 2, TE + 3, TE + 4, TE + 5
                            k.e(f"v_lshlrev_b32 v{lo}, 16, v{pk}")
                            k.e(f"v_and_b32 v{hi}, 0xffff0000, v{pk}")
                            k.e(f"v_lshlrev_b32 v{rl}, 16, v{r + hq}")
                            k.e(f"v_and_b32 v{rh}, 0xffff0000, v{r + hq}")
                            k.e(f"v_add_f32 v{lo}, v{lo}, v{rl}")
                            k.e(f"v_add_f32 v{hi}, v{hi}, v{rh}")
                            k.e(f"v_cvt_pk_bf16_f32 v{pk}, v{lo}, v{hi}")
                if cfg.get("perturb"):
                    for pk in (p0, p1):
                        lo, hi = TE + 2, TE + 3
                        k.e(f"v_lshlrev_b32 v{lo}, 16, v{pk}")
                        k.e(f"v_and_b32 v{hi}, 0xffff0000, v{pk}")
                        k.e(f"v_mul_f32 v{lo}, {f32hex(cfg['perturb'])}, v{lo}")
                        k.e(f"v_mul_f32 v{hi}, {f32hex(cfg['perturb'])}, v{hi}")
                        k.e(f"v_cvt_pk_bf16_f32 v{pk}, v{lo}, v{hi}")
                k.e(f"buffer_store_dwordx2 v[{p0}:{p1}], v{v_eo}, s[16:19], {sr} offen offset:{j * 32}")
        if PROF:
            k.e("s_waitcnt vmcnt(0)")
        stamp()
        k.e(f"s_branch {endlab}")
        stamp_n[0] = stamp_save
        maxv = max(maxv, va2.n)
    k.label(endlab)
    if PROF:
        lab = k.newlabel("noprof")
        k.e(f"s_cmp_lg_u32 s2, {cfg.get('prof_wg', 0)}")
        k.e(f"s_cbranch_scc1 {lab}")
        k.e("s_cmp_lg_u32 s3, 0")
        k.e(f"s_cbranch_scc1 {lab}")
        k.e(f"s_load_dwordx2 s[66:67], s[0:1], {ARG['dbg']}")
        k.e("s_waitcnt lgkmcnt(0)")
        make_srd_from(k, 60, 66, 256)
        k.e("v_mov_b32 v1, 0")
        for i in range(8):
            k.e(f"v_mov_b32 v2, s{70 + 2 * i}")
            k.e(f"buffer_store_dword v2, v1, s[60:63], 0 offen offset:{4 * i}")
        k.label(lab)
    k.label(done)
    k.e("s_endpgm")
    lds = TM * P
    return k, dict(grid=nwg, block=512, lds=lds, nvgpr=maxv, nsgpr=96 if PROF else 64)


def waves_even(ntiles, a, m0=0):
    base = ntiles // 8
    extra = ntiles % 8
    counts = [base + (1 if w < extra else 0) for w in range(8)]
    out = []
    t = 0
    for w in range(8):
        if counts[w] == 0:
            out.append(None)
        else:
            out.append(dict(b=counts[w], t0=t, m0=m0, a=a))
        t += counts[w]
    return out


def phase_cfgs(L):
    xin = ("A_x", 0, D * 2, S * D * 2) if L == 0 else (None, WS.XB0, D * 2, S * D * 2)
    g = lambda n: getattr(WS, f"{n}{L}")
    buf = lambda n, cols=D: (None, g(n), cols * 2, S * cols * 2)
    cfgs = []
    cfgs.append(("qkv", dict(K=448, TM=64, NCB=8, tiles_per_cb=12, wp_off=WS.WP_QKV, waves=waves_even(12, 4),
                             pro="ln", src=xin, epi="store", dst=(None, g("QKV"), 1536 * 2, S * 1536 * 2), TNcols=192)))
    cfgs.append(("wo", dict(K=448, TM=32, NCB=4, tiles_per_cb=7, wp_off=WS.WP_WO, waves=waves_even(7, 2),
                            pro="plain", src=buf("O"), epi="res1", res1=xin, dst=buf("XA"), TNcols=112)))
    cfgs.append(("w1", dict(K=448, TM=32, NCB=4, tiles_per_cb=7, wp_off=WS.WP_W1, waves=waves_even(7, 2),
                            pro="ln2", src=buf("XA"), ystore=g("Y"), epi="gelu", dst=buf("H"), TNcols=112)))
    cfgs.append(("w2", dict(K=448, TM=32, NCB=4, tiles_per_cb=7, wp_off=WS.WP_W2, waves=waves_even(7, 2),
                            pro="shift", src=buf("H"), epi="res1", res1=buf("Y"), dst=buf("X1"), TNcols=112)))
    cfgs.append(("w3", dict(K=448, TM=64, NCB=7, tiles_per_cb=16, wp_off=WS.WP_W3, waves=waves_even(16, 4),
                            pro="ln", src=buf("X1"), epi="gelu", dst=buf("G", F), TNcols=256)))
    dst6 = buf("XB") if L == 0 else ("out", 0, D * 2, S * D * 2)
    cfgs.append(("w4", dict(K=1792, TM=32, NCB=4, tiles_per_cb=7, wp_off=WS.WP_W4, waves=waves_even(7, 2),
                            pro="plain", src=buf("G", F), epi="res2", res1=buf("X1"), res2=buf("XA"), dst=dst6,
                            TNcols=112, depth=16)))
    return cfgs


PQ = 392
SCALE = f32hex(28 ** -0.5)
LOG2E = f32hex(1.4426950408889634)


def emit_attention(k, va, lds_base, s_row0, s_hg, srd_out, sreg_tmp):
    v_u = va.get(); v_hh = va.get(); v_t = va.get(); v_aq = va.get(); v_ak = va.get(); v_av = va.get()
    t0 = va.get(); t1 = va.get(); t2 = va.get(); t3 = va.get()
    Q = va.get(14, 2); K0 = va.get(14, 2); K1 = va.get(14, 2)
    k.e(f"v_and_b32 v{v_u}, 3, v0")
    k.e(f"v_bfe_u32 v{v_hh}, v0, 2, 1")
    k.e(f"v_lshrrev_b32 v{v_t}, 3, v0")
    k.e(f"v_mul_u32_u24 v{v_aq}, {PQ}, v{v_t}")
    k.e(f"v_mul_u32_u24 v{t0}, 56, v{v_hh}")
    k.e(f"v_add_u32 v{v_aq}, v{v_aq}, v{t0}")
    k.e(f"v_add_u32 v{v_aq}, {lds_base + 16 * PQ}, v{v_aq}")
    k.e(f"v_mul_u32_u24 v{t0}, {4 * PQ}, v{v_u}")
    k.e(f"v_sub_u32 v{v_ak}, v{v_aq}, v{t0}")
    k.e(f"v_add_u32 v{v_ak}, 0x{(128 - 2 * PQ) & 0xffffffff:x}, v{v_ak}")
    k.e(f"v_lshlrev_b32 v{t0}, 4, v{v_u}")
    k.e(f"v_add_u32 v{v_av}, v{v_aq}, v{t0}")
    k.e(f"v_add_u32 v{v_av}, 0x{(256 - 14 * PQ) & 0xffffffff:x}, v{v_av}")
    for i in range(7):
        k.e(f"ds_read_b64 v[{Q + 2 * i}:{Q + 2 * i + 1}], v{v_aq} offset:{8 * i}")
    for i in range(7):
        k.e(f"ds_read_b64 v[{K0 + 2 * i}:{K0 + 2 * i + 1}], v{v_ak} offset:{2 * PQ + 8 * i}")
    for i in range(7):
        k.e(f"ds_read_b64 v[{K1 + 2 * i}:{K1 + 2 * i + 1}], v{v_ak} offset:{8 * i}")
    V = va.get(32, 2)
    for j in range(8):
        for h2 in range(2):
            k.e(f"ds_read_b64 v[{V + 4 * j + 2 * h2}:{V + 4 * j + 2 * h2 + 1}], v{v_av} offset:{(14 - 2 * j) * PQ + 8 * h2}")
    l0 = va.get(); l1 = va.get()
    k.e(f"v_mov_b32 v{l0}, 0")
    k.e(f"v_mov_b32 v{l1}, 0")
    k.e("s_waitcnt lgkmcnt(0)")
    for i in range(14):
        k.e(f"v_dot2_f32_bf16 v{l0}, v{Q + i}, v{K0 + i}, v{l0}")
        k.e(f"v_dot2_f32_bf16 v{l1}, v{Q + i}, v{K1 + i}, v{l1}")
    k.e(f"v_cvt_pk_bf16_f32 v{t0}, v{l0}, v{l1}")
    k.e(f"v_lshlrev_b32 v{l0}, 16, v{t0}")
    k.e(f"v_and_b32 v{l1}, 0xffff0000, v{t0}")
    k.e(f"v_mul_f32 v{l0}, {SCALE}, v{l0}")
    k.e(f"v_mul_f32 v{l1}, {SCALE}, v{l1}")
    k.e(f"v_cvt_pk_bf16_f32 v{t0}, v{l0}, v{l1}")
    k.e(f"v_lshlrev_b32 v{l0}, 16, v{t0}")
    k.e(f"v_and_b32 v{l1}, 0xffff0000, v{t0}")
    k.e(f"v_add_u32 v{t1}, {s_row0}, v{v_t}")
    k.e(f"v_lshlrev_b32 v{t2}, 2, v{v_u}")
    k.e(f"v_sub_u32 v{t1}, v{t1}, v{t2}")
    k.e(f"v_mov_b32 v{t3}, 0xce6e6b28")
    k.e(f"v_cmp_gt_i32 vcc, 0, v{t1}")
    k.e(f"v_cndmask_b32 v{l0}, v{l0}, v{t3}, vcc")
    k.e(f"v_cmp_gt_i32 vcc, 2, v{t1}")
    k.e(f"v_cndmask_b32 v{l1}, v{l1}, v{t3}, vcc")
    k.e(f"v_max_f32 v{t0}, v{l0}, v{l1}")
    k.e(f"v_max_f32_dpp v{t1}, v{t0}, v{t0} quad_perm:[1,0,3,2] row_mask:0xf bank_mask:0xf")
    k.e(f"v_max_f32_dpp v{t0}, v{t1}, v{t1} quad_perm:[2,3,0,1] row_mask:0xf bank_mask:0xf")
    k.e(f"v_sub_f32 v{l0}, v{l0}, v{t0}")
    k.e(f"v_sub_f32 v{l1}, v{l1}, v{t0}")
    k.e(f"v_mul_f32 v{l0}, {LOG2E}, v{l0}")
    k.e(f"v_mul_f32 v{l1}, {LOG2E}, v{l1}")
    k.e(f"v_exp_f32 v{l0}, v{l0}")
    k.e(f"v_exp_f32 v{l1}, v{l1}")
    k.e(f"v_add_f32 v{t0}, v{l0}, v{l1}")
    k.e(f"v_add_f32_dpp v{t1}, v{t0}, v{t0} quad_perm:[1,0,3,2] row_mask:0xf bank_mask:0xf")
    k.e(f"v_add_f32_dpp v{t0}, v{t1}, v{t1} quad_perm:[2,3,0,1] row_mask:0xf bank_mask:0xf")
    k.e(f"v_rcp_f32 v{t0}, v{t0}")
    k.e(f"v_mul_f32 v{l0}, v{l0}, v{t0}")
    k.e(f"v_mul_f32 v{l1}, v{l1}, v{t0}")
    k.e(f"v_cvt_pk_bf16_f32 v{t0}, v{l0}, v{l1}")
    PP = va.get(4)
    for uu in range(4):
        k.e(f"v_mov_b32_dpp v{PP + uu}, v{t0} quad_perm:[{uu},{uu},{uu},{uu}] row_mask:0xf bank_mask:0xf")
    OA = va.get(8)
    for d in range(8):
        k.e(f"v_mov_b32 v{OA + d}, 0")
    k.e(f"s_mov_b32 {sreg_tmp[0]}, 0x05040100")
    k.e(f"s_mov_b32 {sreg_tmp[1]}, 0x07060302")
    for uu in range(4):
        ja, jb = 2 * uu, 2 * uu + 1
        for d in range(4):
            A = V + 4 * ja + d; B = V + 4 * jb + d
            k.e(f"v_perm_b32 v{t0}, v{B}, v{A}, {sreg_tmp[0]}")
            k.e(f"v_perm_b32 v{t1}, v{B}, v{A}, {sreg_tmp[1]}")
            k.e(f"v_dot2_f32_bf16 v{OA + 2 * d}, v{t0}, v{PP + uu}, v{OA + 2 * d}")
            k.e(f"v_dot2_f32_bf16 v{OA + 2 * d + 1}, v{t1}, v{PP + uu}, v{OA + 2 * d + 1}")
    OP = va.get(4, 2)
    for d in range(4):
        k.e(f"v_cvt_pk_bf16_f32 v{OP + d}, v{OA + 2 * d}, v{OA + 2 * d + 1}")
    k.e(f"v_add_u32 v{t1}, {s_row0}, v{v_t}")
    k.e(f"v_mul_u32_u24 v{t1}, 896, v{t1}")
    k.e(f"v_lshl_add_u32 v{t2}, {s_hg}, 1, v{v_hh}")
    k.e(f"v_mul_u32_u24 v{t2}, 56, v{t2}")
    k.e(f"v_lshlrev_b32 v{t3}, 4, v{v_u}")
    k.e(f"v_add3_u32 v{t1}, v{t1}, v{t2}, v{t3}")
    k.e(f"buffer_store_dwordx2 v[{OP}:{OP + 1}], v{t1}, s[{srd_out}:{srd_out + 3}], 0 offen")
    k.e(f"v_cmp_gt_u32 vcc, 3, v{v_u}")
    k.e(f"s_and_saveexec_b64 {sreg_tmp[2]}, vcc")
    k.e(f"buffer_store_dwordx2 v[{OP + 2}:{OP + 3}], v{t1}, s[{srd_out}:{srd_out + 3}], 0 offen offset:8")
    k.e(f"s_mov_b64 exec, {sreg_tmp[2]}")


def gen_attn(name, L):
    k = Kern(name)
    nwg = 32 * 8
    done = f"L_{name}_done"
    k.e(f"s_cmp_ge_u32 s2, {nwg}")
    k.e(f"s_cbranch_scc1 {done}")
    k.e(f"s_load_dwordx2 s[40:41], s[0:1], {ARG['ws']}")
    k.e("s_lshr_b32 s4, s2, 3")
    k.e("s_and_b32 s5, s2, 7")
    k.e("s_lshl_b32 s6, s4, 6")
    k.e("s_waitcnt lgkmcnt(0)")
    make_srd_from(k, 12, 40, S * 3072, add=getattr(WS, f"QKV{L}"))
    make_srd_from(k, 16, 40, S * D * 2, add=getattr(WS, f"O{L}"))
    va = VAlloc(1)
    vp = va.get(); vrow = va.get(); vc = va.get(); vg = va.get(); vl = va.get(); vt = va.get()
    ST = va.get(16, 4)
    k.e(f"s_mul_i32 s7, s5, 384")
    k.e(f"s_sub_u32 s42, s6, 16")
    m, sh = magic_div(24, 2048)
    k.e(f"s_mov_b32 s43, 0x{m:x}")
    idx = []
    for i in range(4):
        k.e(f"v_add_u32 v{vp}, {512 * i}, v0")
        k.e(f"v_mul_hi_u32 v{vrow}, v{vp}, s43")
        if sh:
            k.e(f"v_lshrrev_b32 v{vrow}, {sh}, v{vrow}")
        k.e(f"v_mul_u32_u24 v{vt}, 24, v{vrow}")
        k.e(f"v_sub_u32 v{vc}, v{vp}, v{vt}")
        k.e(f"v_add_u32 v{vg}, s42, v{vrow}")
        k.e(f"v_mul_lo_u32 v{vg}, v{vg}, 3072" if False else f"s_movk_i32 s44, 3072")
        k.e(f"v_mul_lo_u32 v{vg}, v{vg}, s44")
        k.e(f"v_lshl_add_u32 v{vg}, v{vc}, 4, v{vg}")
        k.e(f"v_add_u32 v{vg}, s7, v{vg}")
        if i == 3:
            k.e(f"v_cmp_gt_u32 vcc, 1920, v{vp}")
            k.e(f"v_mov_b32 v{vt}, -1")
            k.e(f"v_cndmask_b32 v{vg}, v{vt}, v{vg}, vcc")
        idx.append(k.e(f"buffer_load_dwordx4 v[{ST + 4 * i}:{ST + 4 * i + 3}], v{vg}, s[12:15], 0 offen"))
    for i in range(4):
        k.e(f"v_add_u32 v{vp}, {512 * i}, v0")
        k.e(f"v_mul_hi_u32 v{vrow}, v{vp}, s43")
        if sh:
            k.e(f"v_lshrrev_b32 v{vrow}, {sh}, v{vrow}")
        k.e(f"v_mul_u32_u24 v{vt}, 24, v{vrow}")
        k.e(f"v_sub_u32 v{vc}, v{vp}, v{vt}")
        k.e(f"v_mul_u32_u24 v{vl}, {PQ}, v{vrow}")
        k.e(f"v_lshl_add_u32 v{vl}, v{vc}, 4, v{vl}")
        k.wait_vm(idx[i])
        if i == 3:
            k.e(f"v_cmp_gt_u32 vcc, 1920, v{vp}")
            k.e("s_and_saveexec_b64 s[46:47], vcc")
        k.e(f"ds_write_b128 v{vl}, v[{ST + 4 * i}:{ST + 4 * i + 3}]")
        if i == 3:
            k.e("s_mov_b64 exec, s[46:47]")
    k.e("s_waitcnt lgkmcnt(0)")
    k.e("s_barrier")
    emit_attention(k, va, 0, "s6", "s5", 16, ("s44", "s45", "s[46:47]"))
    k.label(done)
    k.e("s_endpgm")
    return k, dict(grid=nwg, block=512, lds=80 * PQ, nvgpr=va.n, nsgpr=64)


WS.STATS0 = ws_alloc(S * 8)
WS.STATS1 = ws_alloc(S * 8)


def emit_stats(k, X, nd, lpr, T, mode):
    A, B, mb, rv, s1, s2, t0, t1, t2, t3 = [T + i for i in range(10)]
    k.e(f"v_mov_b32 v{s1}, 0")
    k.e(f"v_mov_b32 v{s2}, 0")
    k.e(f"v_mov_b32 v{t2}, 0")
    k.e(f"v_mov_b32 v{t3}, 0")
    for d in range(nd):
        a1 = (s1, t2)[d & 1]
        a2 = (s2, t3)[d & 1]
        k.e(f"v_dot2_f32_bf16 v{a1}, v{X + d}, s28, v{a1}")
        k.e(f"v_dot2_f32_bf16 v{a2}, v{X + d}, v{X + d}, v{a2}")
    k.e(f"v_add_f32 v{s1}, v{s1}, v{t2}")
    k.e(f"v_add_f32 v{s2}, v{s2}, v{t3}")
    emit_row_reduce(k, s1, t0, lpr)
    emit_row_reduce(k, s2, t0, lpr)
    k.e(f"v_mul_f32 v{s1}, {INV448}, v{s1}")
    k.e(f"v_mul_f32 v{s2}, {INV448}, v{s2}")
    k.e(f"v_fma_f32 v{s2}, -v{s1}, v{s1}, v{s2}")
    k.e(f"v_max_f32 v{s2}, 0, v{s2}")
    emit_bf16_round(k, mb, s1, t0)
    emit_bf16_round(k, t1, s2, t0)
    k.e(f"v_add_f32 v{t1}, {EPS}, v{t1}")
    emit_bf16_round(k, t1, t1, t0)
    k.e(f"v_sqrt_f32 v{t1}, v{t1}")
    emit_bf16_round(k, t1, t1, t0)
    k.e(f"v_rcp_f32 v{rv}, v{t1}")
    k.e(f"v_fma_f32 v{t0}, -v{t1}, v{rv}, 2.0")
    k.e(f"v_mul_f32 v{rv}, v{rv}, v{t0}")
    if mode == "ln":
        k.e(f"v_mov_b32 v{A}, v{rv}")
        k.e(f"v_mul_f32 v{B}, v{mb}, v{rv}")
    else:
        k.e(f"v_sub_f32 v{t2}, v{s1}, v{mb}")
        k.e(f"v_mul_f32 v{t2}, v{t2}, v{rv}")
        emit_bf16_round(k, t2, t2, t0)
        k.e(f"v_mul_f32 v{t3}, v{rv}, v{rv}")
        k.e(f"v_mul_f32 v{t3}, v{t3}, v{s2}")
        emit_bf16_round(k, t3, t3, t0)
        k.e(f"v_add_f32 v{t3}, {EPS}, v{t3}")
        emit_bf16_round(k, t3, t3, t0)
        k.e(f"v_sqrt_f32 v{t3}, v{t3}")
        emit_bf16_round(k, t3, t3, t0)
        k.e(f"v_rcp_f32 v{t1}, v{t3}")
        k.e(f"v_fma_f32 v{t0}, -v{t3}, v{t1}, 2.0")
        k.e(f"v_mul_f32 v{t1}, v{t1}, v{t0}")
        k.e(f"v_mul_f32 v{A}, v{rv}, v{t1}")
        k.e(f"v_fma_f32 v{B}, v{mb}, v{rv}, v{t2}")
        k.e(f"v_mul_f32 v{B}, v{B}, v{t1}")


def gen_gemm2(name, cfg):
    K = cfg["K"]; KS = K // 32; TM = cfg["TM"]; NCB = cfg["NCB"]
    NRB = S // TM
    halo = cfg.get("halo", 0)
    ROWS = TM + halo
    P = K * 2 + 32
    LPR = 512 // TM
    RPW = 64 // LPR
    pro = cfg["pro"]
    has_ln = pro in ("ln", "ln2")
    fused_attn = cfg.get("attn", False)
    LSTAT = 0
    LQKV = ROWS * 8
    LX = LQKV + (80 * PQ if fused_attn else 0)
    LX = (LX + 15) // 16 * 16
    k = Kern(name)
    nwg = NRB * NCB
    done = f"L_{name}_done"
    PROF = cfg.get("prof", False)
    stamp_n = [0]
    def stamp():
        if PROF:
            i = stamp_n[0]
            k.e(f"s_memtime s[{70 + 2 * i}:{71 + 2 * i}]")
            stamp_n[0] += 1
    k.e(f"s_cmp_ge_u32 s2, {nwg}")
    k.e(f"s_cbranch_scc1 {done}")
    stamp()
    k.e("s_load_dwordx4 s[32:35], s[0:1], 0")
    k.e(f"s_load_dwordx4 s[36:39], s[0:1], {ARG['out']}")
    k.e(f"s_load_dwordx2 s[40:41], s[0:1], {ARG['ws']}")
    va = VAlloc(1)
    v_lane = va.get(); v_m = va.get(); v_g = va.get(); v_t0 = va.get(); v_t1 = va.get()
    _waves = cfg["waves"]
    _maxb = max(spec["b"] for spec in _waves if spec)
    _depth = cfg.get("depth", KS)
    v_w = va.get(); v_x = va.get(); v_eo = va.get(); v_sm = va.get()
    ONES = va.get(4, 4) if has_ln else None
    WF = va.get(_maxb * _depth * 4, 4)
    vbase = va.n
    k.e(f"v_lshrrev_b32 v{v_t0}, 6, v0")
    k.e(f"v_and_b32 v{v_lane}, 63, v0")
    k.e(f"v_readfirstlane_b32 s3, v{v_t0}")
    if cfg.get("xcdmap", True) and NRB % 8 == 0:
        k.e("s_lshr_b32 s7, s2, 3")
        s_divmod(k, "s4", "s5", "s7", NCB, nwg, "s42")
        k.e("s_and_b32 s7, s2, 7")
        k.e(f"s_mul_i32 s7, s7, {NRB // 8}")
        k.e("s_add_u32 s4, s4, s7")
    else:
        s_divmod(k, "s4", "s5", "s2", NCB, nwg, "s42")
    k.e(f"s_mul_i32 s6, s4, {TM}")
    k.e(f"v_and_b32 v{v_m}, 15, v{v_lane}")
    k.e(f"v_lshrrev_b32 v{v_g}, 4, v{v_lane}")
    k.e("s_mov_b32 s28, 0x3f803f80")
    k.e(f"s_mov_b32 s29, {GELU_K}")
    k.e(f"s_mov_b32 s30, {GELU_C1}")
    k.e("s_waitcnt lgkmcnt(0)")
    stamp()

    def srd(sdst, spec):
        slot, wsoff, pitch, nbytes = spec
        if slot == "A_x":
            make_srd_from(k, sdst, 32, nbytes)
        elif slot == "out":
            make_srd_from(k, sdst, 36, nbytes)
        else:
            make_srd_from(k, sdst, 40, nbytes, add=wsoff)
    make_srd_from(k, 8, 40, WS_BYTES)
    srd(12, cfg["src"])
    srd(16, cfg["dst"])
    if cfg.get("res1"):
        srd(20, cfg["res1"])
    if cfg.get("res2"):
        srd(24, cfg["res2"])
    if cfg.get("stats") is not None:
        make_srd_from(k, 44, 40, S * 8, add=cfg["stats"])

    src_pitch = cfg["src"][2]
    if pro in ("ln", "ln2", "shift"):
        PB = 128 // LPR
    else:
        PB = 16 if (K * 2) % (LPR * 16) == 0 else 8
    chunk = LPR * PB
    ninstr = (K * 2) // chunk
    dwp = PB // 4
    nd = ninstr * dwp
    npass = 2 if halo else 1
    X = va.get(nd * npass, 4)
    v_r = va.get(); v_c = va.get(); v_soff = va.get(); v_lw = va.get()
    lg = {8: 3, 16: 4}[LPR]
    k.e(f"v_lshrrev_b32 v{v_r}, {lg}, v{v_lane}")
    k.e(f"v_and_b32 v{v_c}, {LPR - 1}, v{v_lane}")
    k.e(f"s_mul_i32 s42, s3, {RPW}")
    k.e(f"v_add_u32 v{v_r}, s42, v{v_r}")
    k.e(f"v_mul_u32_u24 v{v_lw}, {P}, v{v_r}")
    k.e(f"v_lshl_add_u32 v{v_lw}, v{v_c}, {PB.bit_length() - 1}, v{v_lw}")
    if LX:
        k.e(f"v_add_u32 v{v_lw}, {LX}, v{v_lw}")
    k.e(f"v_add_u32 v{v_soff}, s6, v{v_r}")
    if halo:
        k.e(f"v_subrev_u32 v{v_soff}, {halo}, v{v_soff}")
    k.e(f"s_movk_i32 s42, {src_pitch}")
    k.e(f"v_mul_lo_u32 v{v_soff}, v{v_soff}, s42")
    k.e(f"v_lshl_add_u32 v{v_soff}, v{v_c}, {PB.bit_length() - 1}, v{v_soff}")
    ldmn = {8: "buffer_load_dwordx2", 16: "buffer_load_dwordx4"}[PB]
    src_idx = []
    if pro == "shift":
        shifts = [1, -1, 2, -2]
        v_sh = va.get()
        for i in range(ninstr):
            b0 = i * chunk
            q0 = b0 // 224
            q1 = (b0 + chunk - 1) // 224
            d0 = (-shifts[q0] * src_pitch + b0) & 0xffffffff
            if q0 == q1:
                k.e(f"v_add_u32 v{v_sh}, 0x{d0:x}, v{v_soff}")
            else:
                d1 = (-shifts[q1] * src_pitch + b0) & 0xffffffff
                cb_ = ((q1 * 224) - b0) // PB
                k.e(f"v_cmp_gt_u32 vcc, {cb_}, v{v_c}")
                k.e(f"v_mov_b32 v{v_t0}, 0x{d1:x}")
                k.e(f"v_mov_b32 v{v_t1}, 0x{d0:x}")
                k.e(f"v_cndmask_b32 v{v_sh}, v{v_t0}, v{v_t1}, vcc")
                k.e(f"v_add_u32 v{v_sh}, v{v_sh}, v{v_soff}")
            src_idx.append(k.e(f"{ldmn} v[{X + i * dwp}:{X + i * dwp + dwp - 1}], v{v_sh}, s[12:15], 0 offen"))
    else:
        for i in range(ninstr):
            src_idx.append(k.e(f"{ldmn} v[{X + i * dwp}:{X + i * dwp + dwp - 1}], v{v_soff}, s[12:15], 0 offen offset:{i * chunk}"))
    if halo:
        v_soff2 = va.get()
        k.e(f"v_add_u32 v{v_soff2}, {TM * src_pitch}, v{v_soff}")
        for i in range(ninstr):
            src_idx.append(k.e(f"{ldmn} v[{X + nd + i * dwp}:{X + nd + i * dwp + dwp - 1}], v{v_soff2}, s[12:15], 0 offen offset:{i * chunk}"))

    waves = cfg["waves"]
    maxb = max(spec["b"] for spec in waves if spec)
    depth = cfg.get("depth", KS)
    k.e(f"v_lshlrev_b32 v{v_w}, 4, v{v_lane}")
    k.e("s_mov_b32 s43, 0")
    for w in range(8):
        if waves[w] and waves[w]["t0"]:
            k.e(f"s_cmp_eq_u32 s3, {w}")
            k.e(f"s_cselect_b32 s43, {waves[w]['t0']}, s43")
    k.e(f"s_mul_i32 s48, s5, {cfg['tiles_per_cb']}")
    k.e("s_add_u32 s48, s48, s43")
    k.e(f"s_mul_i32 s48, s48, {KS * 1024}")
    k.e(f"s_add_u32 s48, s48, 0x{cfg['wp_off']:x}")
    w_idx = {}
    def issue_w(j, s):
        slot = s % depth
        r = WF + (j * depth + slot) * 4
        off = (j * KS + s) * 1024
        hi_off = off & ~4095
        lo_off = off & 4095
        if hi_off:
            k.e(f"s_add_u32 s49, s48, 0x{hi_off:x}")
            sreg = "s49"
        else:
            sreg = "s48"
        w_idx[(j, s)] = k.e(f"buffer_load_dwordx4 v[{r}:{r + 3}], v{v_w}, s[8:11], {sreg} offen offset:{lo_off}")
    import os
    WLATE = os.environ.get("WLATE")
    if cfg.get("xfirst", True) and not WLATE:
        k.e("s_barrier")
    if not WLATE:
        for s in range(min(depth, KS)):
            for j in range(maxb):
                issue_w(j, s)

    k.wait_vm(src_idx[ninstr - 1])
    stamp()
    if WLATE:
        for s in range(min(depth, KS)):
            for j in range(maxb):
                issue_w(j, s)
    T = va.get(10, 2)
    def stats_store(Tb, row_reg_lds):
        pass
    if has_ln:
        emit_stats(k, X, nd, LPR, T, pro)
        v_sa = va.get()
        k.e(f"v_lshlrev_b32 v{v_sa}, 3, v{v_r}")
        k.e(f"ds_write_b64 v{v_sa}, v[{T}:{T + 1}] offset:{LSTAT}") if T % 2 == 0 else None
        assert T % 2 == 0
        if cfg.get("stats") is not None:
            lab = k.newlabel("nost")
            k.e("s_cmp_lg_u32 s5, 0")
            k.e(f"s_cbranch_scc1 {lab}")
            v_gs = va.get()
            k.e(f"v_add_u32 v{v_gs}, s6, v{v_r}")
            k.e(f"v_lshlrev_b32 v{v_gs}, 3, v{v_gs}")
            k.e(f"buffer_store_dwordx2 v[{T + 2}:{T + 3}], v{v_gs}, s[44:47], 0 offen")
            k.label(lab)
            k.e("s_nop 1")
    wrmn = {8: "ds_write_b64", 16: "ds_write_b128"}[PB]
    for i in range(ninstr):
        k.e(f"{wrmn} v{v_lw}, v[{X + i * dwp}:{X + i * dwp + dwp - 1}] offset:{i * chunk}")
    if halo:
        nw2 = halo // RPW
        lab = k.newlabel("nohalo")
        k.e(f"s_cmp_ge_u32 s3, {nw2}")
        k.e(f"s_cbranch_scc1 {lab}")
        k.wait_vm(src_idx[-1])
        if has_ln:
            emit_stats(k, X + nd, nd, LPR, T, pro)
            k.e(f"ds_write_b64 v{v_sa}, v[{T}:{T + 1}] offset:{LSTAT + TM * 8}")
        for i in range(ninstr):
            k.e(f"{wrmn} v{v_lw}, v[{X + nd + i * dwp}:{X + nd + i * dwp + dwp - 1}] offset:{TM * P + i * chunk}")
        k.label(lab)
        k.e("s_nop 1")
    k.e("s_waitcnt lgkmcnt(0)")
    stamp()
    k.e("s_barrier")
    stamp()

    dst_pitch = cfg["dst"][2]
    k.e(f"v_mul_u32_u24 v{v_x}, {P}, v{v_m}")
    k.e(f"v_lshl_add_u32 v{v_x}, v{v_g}, 4, v{v_x}")
    if LX:
        k.e(f"v_add_u32 v{v_x}, {LX}, v{v_x}")
    v_x2 = None
    k.e(f"s_movk_i32 s42, {dst_pitch}")
    k.e(f"v_mul_lo_u32 v{v_eo}, v{v_m}, s42")
    k.e(f"v_lshl_add_u32 v{v_eo}, v{v_g}, 3, v{v_eo}")
    if has_ln:
        for r in range(4):
            k.e(f"v_mov_b32 v{ONES + r}, s28")
    k.e(f"v_lshlrev_b32 v{v_sm}, 3, v{v_m}")

    endlab = f"L_{name}_end"
    variants = {}
    for w, spec in enumerate(waves):
        key = None if spec is None else (spec["b"], spec["m0"], spec["a"])
        variants.setdefault(key, []).append(w)
    vlist = [(key, ws_) for key, ws_ in variants.items() if key is not None]
    labs = {key: k.newlabel("var") for key, _ in vlist}
    for key, ws_ in vlist:
        for w in ws_:
            k.e(f"s_cmp_eq_u32 s3, {w}")
            k.e(f"s_cbranch_scc1 {labs[key]}")
    k.e(f"s_branch {endlab}")
    maxv = va.n
    for key, ws_ in vlist:
        b, m0, a = key
        va2 = VAlloc(vbase)
        k.label(labs[key])
        k.e("s_nop 4")
        ACC = va2.get(a * b * 4, 4)
        XF = va2.get(2 * a * 4, 4)
        CS = va2.get(b * 4, 4) if has_ln else None
        for r in range(a * b * 4):
            k.e(f"v_mov_b32 v{ACC + r}, 0")
        if has_ln:
            for r in range(b * 4):
                k.e(f"v_mov_b32 v{CS + r}, 0")
        RES = None
        nres = {"store": 0, "gelu": 0, "res1": 1, "res2": 2, "resln": 1, "attn": 0}[cfg["epi"]]
        if nres:
            RES = va2.get(a * b * 2 * nres, 2)
        k.e(f"s_mul_i32 s50, s6, {dst_pitch}")
        k.e(f"s_mul_i32 s51, s5, {cfg['TNcols'] * 2}")
        k.e("s_add_u32 s50, s50, s51")
        k.e(f"s_lshl_b32 s51, s43, 5")
        k.e("s_add_u32 s50, s50, s51")
        res_idx = []
        def tile_soff(i):
            o = (m0 + i) * 16 * dst_pitch - halo * dst_pitch
            if o == 0:
                return "s50"
            k.e(f"s_add_u32 s52, s50, {o}")
            return "s52"
        if nres:
            for i in range(a):
                sr = tile_soff(i)
                for j in range(b):
                    for q in range(nres):
                        r = RES + ((i * b + j) * nres + q) * 2
                        srdn = (20, 24)[q]
                        res_idx.append(k.e(f"buffer_load_dwordx2 v[{r}:{r + 1}], v{v_eo}, s[{srdn}:{srdn + 3}], {sr} offen offset:{j * 32}"))
        RST = None
        if cfg["epi"] == "resln":
            RST = va2.get(a * 2, 2)
            v_rs = va2.get()
            k.e(f"v_add_u32 v{v_rs}, s6, v{v_m}")
            k.e(f"v_lshlrev_b32 v{v_rs}, 3, v{v_rs}")
            for i in range(a):
                res_idx.append(k.e(f"buffer_load_dwordx2 v[{RST + 2 * i}:{RST + 2 * i + 1}], v{v_rs}, s[44:47], 0 offen offset:{(m0 + i) * 128}"))

        def xoff(i, s):
            return (m0 + i) * 16 * P + 64 * s
        need_x2 = xoff(a - 1, KS - 1) > 65535
        if need_x2:
            v_x2 = va2.get()
            k.e(f"v_add_u32 v{v_x2}, {4 * 16 * P}, v{v_x}")
        def issue_x(s):
            buf = s % 2
            idx = None
            for i in range(a):
                r = XF + (buf * a + i) * 4
                o = xoff(i, s)
                if o > 65535 - 64:
                    idx = k.e(f"ds_read_b128 v[{r}:{r + 3}], v{v_x2} offset:{o - 4 * 16 * P}")
                else:
                    idx = k.e(f"ds_read_b128 v[{r}:{r + 3}], v{v_x} offset:{o}")
            return idx
        xi = issue_x(0)
        for s in range(KS):
            nxt = issue_x(s + 1) if s + 1 < KS else None
            k.wait_lg(xi)
            for j in range(b):
                if (j, s) in w_idx:
                    k.wait_vm(w_idx[(j, s)])
            buf = s % 2
            for j in range(b):
                wr = WF + (j * depth + (s % depth)) * 4
                for i in range(a):
                    xr = XF + (buf * a + i) * 4
                    ar = ACC + (i * b + j) * 4
                    k.e(f"v_mfma_f32_16x16x32_bf16 v[{ar}:{ar + 3}], v[{wr}:{wr + 3}], v[{xr}:{xr + 3}], v[{ar}:{ar + 3}]")
                if has_ln:
                    k.e(f"v_mfma_f32_16x16x32_bf16 v[{CS + 4 * j}:{CS + 4 * j + 3}], v[{wr}:{wr + 3}], v[{ONES}:{ONES + 3}], v[{CS + 4 * j}:{CS + 4 * j + 3}]")
            if s + depth < KS:
                for j in range(b):
                    issue_w(j, s + depth)
            xi = nxt
        stamp_save = stamp_n[0]
        stamp()
        TE = va2.get(8, 2)
        AB = None
        if has_ln:
            AB = va2.get(2 * a, 2)
            idx = None
            for i in range(a):
                idx = k.e(f"ds_read_b64 v[{AB + 2 * i}:{AB + 2 * i + 1}], v{v_sm} offset:{LSTAT + (m0 + i) * 128}")
            k.wait_lg(idx)
        if res_idx:
            k.wait_vm(res_idx[-1])
        if fused_attn:
            v_qa = va2.get()
            k.e(f"v_mul_u32_u24 v{v_qa}, {PQ}, v{v_m}")
            k.e(f"v_lshl_add_u32 v{v_qa}, v{v_g}, 3, v{v_qa}")
            k.e("s_lshr_b32 s52, s43, 2")
            k.e("s_lshl_b32 s52, s52, 7")
            k.e("s_and_b32 s53, s43, 3")
            k.e("s_lshl_b32 s53, s53, 5")
            k.e("s_add_u32 s52, s52, s53")
            k.e(f"v_add_u32 v{v_qa}, s52, v{v_qa}")
        for i in range(a):
            sr = tile_soff(i) if not fused_attn else None
            for j in range(b):
                ar = ACC + (i * b + j) * 4
                if has_ln:
                    for e_ in range(4):
                        k.e(f"v_mul_f32 v{TE + 2}, v{CS + 4 * j + e_}, v{AB + 2 * i + 1}")
                        k.e(f"v_fma_f32 v{ar + e_}, v{ar + e_}, v{AB + 2 * i}, -v{TE + 2}")
                p0, p1 = TE, TE + 1
                k.e(f"v_cvt_pk_bf16_f32 v{p0}, v{ar}, v{ar + 1}")
                k.e(f"v_cvt_pk_bf16_f32 v{p1}, v{ar + 2}, v{ar + 3}")
                if cfg["epi"] == "gelu":
                    emit_gelu_pair(k, p0, TE + 2)
                    emit_gelu_pair(k, p1, TE + 2)
                elif cfg["epi"] in ("res1", "res2", "resln"):
                    for q in range(nres):
                        r = RES + ((i * b + j) * nres + q) * 2
                        for hq, pk in enumerate((p0, p1)):
                            lo, hi, rl, rh = TE + 2, TE + 3, TE + 4, TE + 5
                            k.e(f"v_lshlrev_b32 v{rl}, 16, v{r + hq}")
                            k.e(f"v_and_b32 v{rh}, 0xffff0000, v{r + hq}")
                            if cfg["epi"] == "resln":
                                mbr, rvr = RST + 2 * i, RST + 2 * i + 1
                                k.e(f"v_sub_f32 v{rl}, v{rl}, v{mbr}")
                                k.e(f"v_sub_f32 v{rh}, v{rh}, v{mbr}")
                                k.e(f"v_cvt_pk_bf16_f32 v{lo}, v{rl}, v{rh}")
                                k.e(f"v_lshlrev_b32 v{rl}, 16, v{lo}")
                                k.e(f"v_and_b32 v{rh}, 0xffff0000, v{lo}")
                                k.e(f"v_mul_f32 v{rl}, v{rl}, v{rvr}")
                                k.e(f"v_mul_f32 v{rh}, v{rh}, v{rvr}")
                                k.e(f"v_cvt_pk_bf16_f32 v{lo}, v{rl}, v{rh}")
                                k.e(f"v_lshlrev_b32 v{rl}, 16, v{lo}")
                                k.e(f"v_and_b32 v{rh}, 0xffff0000, v{lo}")
                            k.e(f"v_lshlrev_b32 v{lo}, 16, v{pk}")
                            k.e(f"v_and_b32 v{hi}, 0xffff0000, v{pk}")
                            k.e(f"v_add_f32 v{lo}, v{lo}, v{rl}")
                            k.e(f"v_add_f32 v{hi}, v{hi}, v{rh}")
                            k.e(f"v_cvt_pk_bf16_f32 v{pk}, v{lo}, v{hi}")
                if fused_attn:
                    k.e(f"ds_write_b64 v{v_qa}, v[{p0}:{p1}] offset:{LQKV + (m0 + i) * 16 * PQ + j * 32}")
                else:
                    k.e(f"buffer_store_dwordx2 v[{p0}:{p1}], v{v_eo}, s[16:19], {sr} offen offset:{j * 32}")
        if PROF:
            k.e("s_waitcnt vmcnt(0) lgkmcnt(0)")
        stamp()
        k.e(f"s_branch {endlab}")
        stamp_n[0] = stamp_save
        maxv = max(maxv, va2.n)
    k.label(endlab)
    k.e("s_nop 1")
    if fused_attn:
        k.e("s_waitcnt lgkmcnt(0)")
        k.e("s_barrier")
        va3 = VAlloc(vbase)
        emit_attention(k, va3, LQKV, "s6", "s5", 16, ("s52", "s53", "s[54:55]"))
        maxv = max(maxv, va3.n)
    if PROF:
        lab = k.newlabel("noprof")
        k.e(f"s_cmp_lg_u32 s2, {cfg.get('prof_wg', 0)}")
        k.e(f"s_cbranch_scc1 {lab}")
        k.e("s_cmp_lg_u32 s3, 0")
        k.e(f"s_cbranch_scc1 {lab}")
        k.e(f"s_load_dwordx2 s[66:67], s[0:1], {ARG['dbg']}")
        k.e("s_waitcnt lgkmcnt(0)")
        make_srd_from(k, 60, 66, 256)
        k.e("v_mov_b32 v1, 0")
        for i in range(8):
            k.e(f"v_mov_b32 v2, s{70 + 2 * i}")
            k.e(f"buffer_store_dword v2, v1, s[60:63], 0 offen offset:{4 * i}")
        k.label(lab)
    k.label(done)
    k.e("s_endpgm")
    lds = LX + ROWS * P
    return k, dict(grid=nwg, block=512, lds=lds, nvgpr=maxv, nsgpr=96 if PROF else 64)


def phase_cfgs2(L):
    xin = ("A_x", 0, D * 2, S * D * 2) if L == 0 else (None, WS.XB0, D * 2, S * D * 2)
    g = lambda n: getattr(WS, f"{n}{L}")
    buf = lambda n, cols=D: (None, g(n), cols * 2, S * cols * 2)
    cfgs = []
    qw = [dict(b=2, t0=4, m0=0, a=5), dict(b=2, t0=6, m0=0, a=5), dict(b=2, t0=8, m0=0, a=5), dict(b=2, t0=10, m0=0, a=5),
          dict(b=1, t0=0, m0=1, a=4), dict(b=1, t0=1, m0=1, a=4), dict(b=1, t0=2, m0=1, a=4), dict(b=1, t0=3, m0=1, a=4)]
    cfgs.append(("qkv", dict(K=448, TM=64, halo=16, NCB=8, tiles_per_cb=12, wp_off=WS.WP_QKV, waves=qw,
                             pro="ln", src=xin, epi="attn", attn=True, dst=buf("O"), TNcols=192)))
    cfgs.append(("wo", dict(K=448, TM=32, NCB=4, tiles_per_cb=7, wp_off=WS.WP_WO, waves=waves_even(7, 2),
                            pro="plain", src=buf("O"), epi="res1", res1=xin, dst=buf("XA"), TNcols=112)))
    cfgs.append(("w1", dict(K=448, TM=32, NCB=4, tiles_per_cb=7, wp_off=WS.WP_W1, waves=waves_even(7, 2),
                            pro="ln2", src=buf("XA"), stats=getattr(WS, f"STATS{L}"), epi="gelu", dst=buf("H"), TNcols=112)))
    cfgs.append(("w2", dict(K=448, TM=32, NCB=4, tiles_per_cb=7, wp_off=WS.WP_W2, waves=waves_even(7, 2),
                            pro="shift", src=buf("H"), epi="resln", res1=buf("XA"), stats=getattr(WS, f"STATS{L}"),
                            dst=buf("X1"), TNcols=112)))
    cfgs.append(("w3", dict(K=448, TM=64, NCB=7, tiles_per_cb=16, wp_off=WS.WP_W3, waves=waves_even(16, 4),
                            pro="ln", src=buf("X1"), epi="gelu", dst=buf("G", F), TNcols=256)))
    dst6 = buf("XB") if L == 0 else ("out", 0, D * 2, S * D * 2)
    cfgs.append(("w4", dict(K=1792, TM=32, NCB=4, tiles_per_cb=7, wp_off=WS.WP_W4, waves=waves_even(7, 2),
                            pro="plain", src=buf("G", F), epi="res2", res1=buf("X1"), res2=buf("XA"), dst=dst6,
                            TNcols=112, depth=16)))
    return cfgs

def write_file(kernels, path):
    hdr = open(f"cdna_kernels/{NAME}.s.ref").read().split("; Override launch")[0]
    out = hdr
    for (k, meta) in kernels:
        out += f"; @launch kernel={k.name} grid=({meta['grid']},1,1) block=({meta['block']},1,1) lds={meta['lds']}\n"
    out += '.amdgcn_target "amdgcn-amd-amdhsa--gfx950"\n.text\n'
    descs = ""
    seen = set()
    for (k, meta) in kernels:
        if k.name in seen:
            continue
        seen.add(k.name)
        nv = meta.get("nvgpr", 256)
        nv8 = (nv + 7) // 8 * 8
        txt, desc = kernel_text(k, nvgpr=nv8, nsgpr=meta.get("nsgpr", 102), accum=min(256, (nv8 + 3) // 4 * 4))
        out += txt
        descs += desc
    out += '.section .rodata,"a"\n' + descs
    open(path, "w").write(out)


def build_list(prof=None):
    ks = [gen_prep()]
    for L in (0, 1):
        for (nm, cfg) in phase_cfgs2(L):
            if prof and L == 0:
                cfg["prof"] = True
                cfg["prof_wg"] = 40
            ks.append(gen_gemm2(f"{nm}{L}_kernel", cfg))
    return ks
    for L in (0, 1):
        for (nm, cfg) in phase_cfgs(L):
            ks.append(gen_gemm(f"{nm}{L}_kernel", cfg))
            if nm == "qkv":
                ks.append(gen_attn(f"attn{L}_kernel", L))
    return ks


if __name__ == "__main__":
    import os
    ks = build_list(prof=os.environ.get('PROF'))
    out = sys.argv[1] if len(sys.argv) > 1 else "dev.s"
    write_file(ks, out)
    for k, meta in ks:
        print(k.name, meta)
    regions = {}
    for L in (0, 1):
        a, b = f"L{2*L}_", f"L{2*L+1}_"
        regions[a + "o"] = [getattr(WS, f"O{L}"), S, D]
        regions[a + "xa"] = [getattr(WS, f"XA{L}"), S, D]
        regions[b + "y"] = [getattr(WS, f"Y{L}"), S, D]
        regions[b + "h"] = [getattr(WS, f"H{L}"), S, D]
        regions[b + "x1"] = [getattr(WS, f"X1{L}"), S, D]
        regions[b + "g"] = [getattr(WS, f"G{L}"), S, F]
        if L == 0:
            regions[b + "xb"] = [getattr(WS, f"XB{L}"), S, D]
        regions[f"qkvp{L}"] = [getattr(WS, f"QKV{L}"), S, 1536]
    json.dump({"regions": regions, "nlaunch": None}, open("spec.json", "w"))
    print("ws bytes used:", _off[0])
```

```python
import sys, json
sys.path.insert(0, "gen")
from asmlib import Kern, kernel_text, f32hex

NAME = "interleave_layers__sliding_local_dilated__mixer_s_mlp__prompt"
S, D, F = 2048, 448, 1792

ARG = dict(A_x=0, A_wqkv=8, A_wo=16, B_x=24, B_w1=32, B_w2=40, B_w3=48, B_w4=56, out=64, dbg=72, ws=80)
WS_BYTES = 268435456

class WS:
    pass

_off = [0]
def ws_alloc(nbytes):
    o = _off[0]
    _off[0] = (o + nbytes + 4095) // 4096 * 4096
    return o

WS.WP_QKV = ws_alloc(96 * 14 * 1024)
WS.WP_WO = ws_alloc(28 * 14 * 1024)
WS.WP_W1 = ws_alloc(28 * 14 * 1024)
WS.WP_W2 = ws_alloc(28 * 14 * 1024)
WS.WP_W3 = ws_alloc(112 * 14 * 1024)
WS.WP_W4 = ws_alloc(28 * 56 * 1024)
for L in (0, 1):
    setattr(WS, f"QKV{L}", ws_alloc(S * 1536 * 2))
    for n in ("O", "XA", "Y", "H", "X1", "XB"):
        setattr(WS, f"{n}{L}", ws_alloc(S * D * 2))
    setattr(WS, f"G{L}", ws_alloc(S * F * 2))

def magic_div(d, maxn):
    for sh in range(0, 8):
        m = ((1 << (32 + sh)) + d - 1) // d
        if m >= (1 << 32):
            continue
        ok = all(((n * m) >> (32 + sh)) == n // d for n in range(maxn))
        if ok:
            return m, sh
    raise ValueError


def s_divmod(k, sq, sr, sn, d, maxn, stmp):
    m, sh = magic_div(d, maxn)
    k.e(f"s_mul_hi_u32 {sq}, {sn}, 0x{m:x}")
    if sh:
        k.e(f"s_lshr_b32 {sq}, {sq}, {sh}")
    k.e(f"s_mul_i32 {stmp}, {sq}, {d}")
    k.e(f"s_sub_u32 {sr}, {sn}, {stmp}")


def load_srd(k, sdst, argoff, nbytes, add=0, stmp=None):
    raise NotImplementedError


def make_srd_from(k, sdst, sptr, nbytes, add=0):
    if add:
        k.e(f"s_add_u32 s{sdst}, s{sptr}, 0x{add:x}")
        k.e(f"s_addc_u32 s{sdst+1}, s{sptr+1}, 0")
    else:
        k.e(f"s_mov_b32 s{sdst}, s{sptr}")
        k.e(f"s_mov_b32 s{sdst+1}, s{sptr+1}")
    k.e(f"s_and_b32 s{sdst+1}, s{sdst+1}, 0xffff")
    k.e(f"s_mov_b32 s{sdst+2}, 0x{nbytes:x}")
    k.e(f"s_mov_b32 s{sdst+3}, 0x00020000")


PREP_MATS = [
    ("A_wqkv", 448, 1344, WS.WP_QKV, 96, "qkv"),
    ("A_wo", 448, 448, WS.WP_WO, 28, "plain"),
    ("B_w1", 448, 448, WS.WP_W1, 28, "plain"),
    ("B_w2", 448, 448, WS.WP_W2, 28, "plain"),
    ("B_w3", 448, 1792, WS.WP_W3, 112, "plain"),
    ("B_w4", 1792, 448, WS.WP_W4, 28, "plain"),
]
PREP_NBLK = sum(nt * (K // 32) for (_, K, N, _, nt, _) in PREP_MATS)


def gen_prep():
    BPW = 4
    k = Kern("prep_kernel")
    nwaves = (PREP_NBLK + BPW - 1) // BPW
    k.e("v_lshrrev_b32 v1, 6, v0")
    k.e("s_nop 0")
    k.e("v_readfirstlane_b32 s3, v1")
    k.e("s_lshl_b32 s4, s2, 2")
    k.e("s_add_u32 s4, s4, s3")
    k.e(f"s_cmp_ge_u32 s4, {nwaves}")
    k.e("s_cbranch_scc1 L_prep_done")
    k.e("s_load_dwordx4 s[8:11], s[0:1], 0")
    k.e("s_load_dwordx4 s[12:15], s[0:1], 16")
    k.e("s_load_dwordx4 s[16:19], s[0:1], 32")
    k.e("s_load_dwordx4 s[20:23], s[0:1], 48")
    k.e(f"s_load_dwordx2 s[24:25], s[0:1], {ARG['ws']}")
    k.e("v_and_b32 v2, 63, v0")
    k.e("v_lshrrev_b32 v3, 4, v2")
    k.e("v_and_b32 v4, 15, v2")
    k.e("v_lshlrev_b32 v5, 4, v2")
    k.e("s_lshl_b32 s4, s4, 2")
    k.e("s_waitcnt lgkmcnt(0)")
    make_srd_from(k, 28, 24, WS_BYTES)
    ptr = {"A_wqkv": 10, "A_wo": 12, "B_w1": 16, "B_w2": 18, "B_w3": 20, "B_w4": 22}
    for bi in range(BPW):
        LD = 16 + 8 * bi
        SD = 60 + bi
        k.e(f"s_add_u32 s48, s4, {bi}")
        base = 0
        ldone = f"L_prep_b{bi}_done"
        for (arg, K, N, wsoff, ntiles, kind) in PREP_MATS:
            nb = ntiles * (K // 32)
            KS = K // 32
            lab_next = f"L_prep_n_{arg}_{bi}"
            k.e(f"s_cmp_ge_u32 s48, {base + nb}")
            k.e(f"s_cbranch_scc1 {lab_next}")
            k.e(f"s_sub_u32 s5, s48, {base}")
            s_divmod(k, "s6", "s7", "s5", KS, nb, "s32")
            if kind == "plain":
                k.e("s_lshl_b32 s33, s6, 4")
            else:
                s_divmod(k, "s34", "s35", "s6", 12, 96, "s32")
                k.e("s_lshr_b32 s36, s35, 2")
                k.e("s_and_b32 s37, s35, 3")
                k.e("s_mul_i32 s33, s36, 448")
                k.e("s_mul_i32 s32, s34, 56")
                k.e("s_add_u32 s33, s33, s32")
                k.e("s_lshl_b32 s32, s37, 4")
                k.e("s_add_u32 s33, s33, s32")
            make_srd_from(k, 40, ptr[arg], K * N * 2)
            k.e(f"s_mul_i32 s44, s7, {32 * N}")
            k.e("s_add_u32 s44, s44, s33")
            k.e("s_lshl_b32 s44, s44, 1")
            k.e(f"s_movk_i32 s45, {8 * N}")
            k.e("v_mul_lo_u32 v6, v3, s45")
            k.e("v_add_lshl_u32 v6, v6, v4, 1")
            for j in range(8):
                k.e(f"s_add_u32 s46, s44, {j * N * 2}")
                k.e(f"buffer_load_ushort v{LD + j}, v6, s[40:43], s46 offen")
            k.e(f"s_lshl_b32 s{SD}, s5, 10")
            k.e(f"s_add_u32 s{SD}, s{SD}, 0x{wsoff:x}")
            k.e(f"s_branch {ldone}")
            k.label(lab_next)
            base += nb
        k.e(f"s_mov_b32 s{SD}, 0x{WS_BYTES:x}")
        k.label(ldone)
        k.e("s_nop 0")
    k.e("s_waitcnt vmcnt(0)")
    for bi in range(BPW):
        LD = 16 + 8 * bi
        for j in range(4):
            k.e(f"v_lshl_or_b32 v{8 + j}, v{LD + 1 + 2 * j}, 16, v{LD + 2 * j}")
        k.e(f"buffer_store_dwordx4 v[8:11], v5, s[28:31], s{60 + bi} offen")
        k.e("s_nop 1")
    k.label("L_prep_done")
    k.e("s_endpgm")
    grid = (nwaves + 3) // 4
    return k, dict(grid=grid, block=256, lds=0, nvgpr=48, nsgpr=72)


INV448 = f32hex(1.0 / 448.0)
EPS = f32hex(1e-5)
GELU_C1 = f32hex(-2.0 * 0.7978845608028654 * 1.4426950408889634)
GELU_K = f32hex(0.044715)

class VAlloc:
    def __init__(self, start=1, limit=256):
        self.n = start
        self.limit = limit
    def get(self, cnt=1, align=1):
        self.n = (self.n + align - 1) // align * align
        b = self.n
        self.n += cnt
        assert self.n <= self.limit, f"out of VGPRs {self.n}"
        return b


def emit_bf16_round(k, dst_f32, src_f32, tmp):
    k.e(f"v_cvt_pk_bf16_f32 v{tmp}, v{src_f32}, v{src_f32}")
    k.e(f"v_lshlrev_b32 v{dst_f32}, 16, v{tmp}")


def emit_row_reduce(k, vsum, vt, lpr):
    k.e(f"v_add_f32_dpp v{vt}, v{vsum}, v{vsum} quad_perm:[1,0,3,2] row_mask:0xf bank_mask:0xf")
    k.e(f"v_add_f32_dpp v{vsum}, v{vt}, v{vt} quad_perm:[2,3,0,1] row_mask:0xf bank_mask:0xf")
    k.e(f"v_add_f32_dpp v{vt}, v{vsum}, v{vsum} row_half_mirror row_mask:0xf bank_mask:0xf")
    if lpr == 16:
        k.e(f"v_add_f32_dpp v{vsum}, v{vt}, v{vt} row_mirror row_mask:0xf bank_mask:0xf")
    else:
        k.e(f"v_mov_b32 v{vsum}, v{vt}")


def emit_ln(k, X, nd, lpr, T):
    a0, a1, a2, a3, t0, mf, dl, lo, hi, s2a, s2b, rv = [T + i for i in range(12)]
    for i, r in enumerate((a0, a1, a2, a3)):
        k.e(f"v_mov_b32 v{r}, 0")
    for d in range(nd):
        acc = (a0, a1, a2, a3)[d % 4]
        k.e(f"v_dot2_f32_bf16 v{acc}, v{X + d}, s28, v{acc}")
    k.e(f"v_add_f32 v{a0}, v{a0}, v{a1}")
    k.e(f"v_add_f32 v{a2}, v{a2}, v{a3}")
    k.e(f"v_add_f32 v{a0}, v{a0}, v{a2}")
    emit_row_reduce(k, a0, t0, lpr)
    k.e(f"v_mul_f32 v{a0}, {INV448}, v{a0}")
    emit_bf16_round(k, mf, a0, t0)
    k.e(f"v_sub_f32 v{dl}, v{a0}, v{mf}")
    k.e(f"v_mov_b32 v{s2a}, 0")
    k.e(f"v_mov_b32 v{s2b}, 0")
    for d in range(nd):
        k.e(f"v_lshlrev_b32 v{lo}, 16, v{X + d}")
        k.e(f"v_and_b32 v{hi}, 0xffff0000, v{X + d}")
        k.e(f"v_sub_f32 v{lo}, v{lo}, v{mf}")
        k.e(f"v_sub_f32 v{hi}, v{hi}, v{mf}")
        k.e(f"v_fmac_f32 v{s2a}, v{lo}, v{lo}")
        k.e(f"v_fmac_f32 v{s2b}, v{hi}, v{hi}")
        k.e(f"v_cvt_pk_bf16_f32 v{X + d}, v{lo}, v{hi}")
    k.e(f"v_add_f32 v{s2a}, v{s2a}, v{s2b}")
    emit_row_reduce(k, s2a, t0, lpr)
    k.e(f"v_mul_f32 v{s2a}, {INV448}, v{s2a}")
    k.e(f"v_fma_f32 v{s2a}, -v{dl}, v{dl}, v{s2a}")
    emit_bf16_round(k, s2a, s2a, t0)
    k.e(f"v_add_f32 v{s2a}, {EPS}, v{s2a}")
    emit_bf16_round(k, s2a, s2a, t0)
    k.e(f"v_sqrt_f32 v{s2a}, v{s2a}")
    emit_bf16_round(k, s2a, s2a, t0)
    k.e(f"v_rcp_f32 v{rv}, v{s2a}")
    k.e(f"v_fma_f32 v{t0}, -v{s2a}, v{rv}, 2.0")
    k.e(f"v_mul_f32 v{rv}, v{rv}, v{t0}")
    for d in range(nd):
        k.e(f"v_lshlrev_b32 v{lo}, 16, v{X + d}")
        k.e(f"v_and_b32 v{hi}, 0xffff0000, v{X + d}")
        k.e(f"v_mul_f32 v{lo}, v{lo}, v{rv}")
        k.e(f"v_mul_f32 v{hi}, v{hi}, v{rv}")
        k.e(f"v_cvt_pk_bf16_f32 v{X + d}, v{lo}, v{hi}")


def emit_gelu_pair(k, pk, T):
    x0, x1, t0, t1 = T, T + 1, T + 2, T + 3
    k.e(f"v_lshlrev_b32 v{x0}, 16, v{pk}")
    k.e(f"v_and_b32 v{x1}, 0xffff0000, v{pk}")
    for (x, t) in ((x0, t0), (x1, t1)):
        k.e(f"v_mul_f32 v{t}, v{x}, v{x}")
    for (x, t) in ((x0, t0), (x1, t1)):
        k.e(f"v_fma_f32 v{t}, v{t}, s29, 1.0")
    for (x, t) in ((x0, t0), (x1, t1)):
        k.e(f"v_mul_f32 v{t}, v{t}, v{x}")
    for (x, t) in ((x0, t0), (x1, t1)):
        k.e(f"v_mul_f32 v{t}, s30, v{t}")
    for (x, t) in ((x0, t0), (x1, t1)):
        k.e(f"v_exp_f32 v{t}, v{t}")
    for (x, t) in ((x0, t0), (x1, t1)):
        k.e(f"v_add_f32 v{t}, 1.0, v{t}")
    for (x, t) in ((x0, t0), (x1, t1)):
        k.e(f"v_rcp_f32 v{t}, v{t}")
    for (x, t) in ((x0, t0), (x1, t1)):
        k.e(f"v_mul_f32 v{x}, v{x}, v{t}")
    k.e(f"v_cvt_pk_bf16_f32 v{pk}, v{x0}, v{x1}")


def gen_gemm(name, cfg):
    K = cfg["K"]; KS = K // 32; TM = cfg["TM"]; NCB = cfg["NCB"]
    NRB = S // TM
    P = K * 2 + 32
    LPR = 512 // TM
    RPW = 64 // LPR
    k = Kern(name)
    nwg = NRB * NCB
    done = f"L_{name}_done"
    PROF = cfg.get("prof", False)
    stamp_n = [0]
    def stamp():
        if PROF:
            i = stamp_n[0]
            k.e(f"s_memtime s[{70 + 2 * i}:{71 + 2 * i}]")
            stamp_n[0] += 1
    k.e(f"s_cmp_ge_u32 s2, {nwg}")
    k.e(f"s_cbranch_scc1 {done}")
    stamp()
    k.e("s_load_dwordx4 s[32:35], s[0:1], 0")
    k.e(f"s_load_dwordx4 s[36:39], s[0:1], {ARG['out']}")
    k.e(f"s_load_dwordx2 s[40:41], s[0:1], {ARG['ws']}")
    va = VAlloc(1)
    v_lane = va.get(); v_m = va.get(); v_g = va.get(); v_t0 = va.get(); v_t1 = va.get()
    k.e(f"v_lshrrev_b32 v{v_t0}, 6, v0")
    k.e(f"v_and_b32 v{v_lane}, 63, v0")
    k.e(f"v_readfirstlane_b32 s3, v{v_t0}")
    s_divmod(k, "s4", "s5", "s2", NCB, nwg, "s42")
    k.e(f"s_mul_i32 s6, s4, {TM}")
    k.e(f"v_and_b32 v{v_m}, 15, v{v_lane}")
    k.e(f"v_lshrrev_b32 v{v_g}, 4, v{v_lane}")
    k.e("s_mov_b32 s28, 0x3f803f80")
    k.e(f"s_mov_b32 s29, {GELU_K}")
    k.e(f"s_mov_b32 s30, {GELU_C1}")
    k.e("s_waitcnt lgkmcnt(0)")
    stamp()

    def srd(sdst, spec):
        slot, wsoff, pitch, nbytes = spec
        if slot == "A_x":
            make_srd_from(k, sdst, 32, nbytes)
        elif slot == "out":
            make_srd_from(k, sdst, 36, nbytes)
        else:
            make_srd_from(k, sdst, 40, nbytes, add=wsoff)
    make_srd_from(k, 8, 40, WS_BYTES)
    srd(12, cfg["src"])
    srd(16, cfg["dst"])
    if cfg.get("res1"):
        srd(20, cfg["res1"])
    if cfg.get("res2"):
        srd(24, cfg["res2"])
    if cfg.get("ystore") is not None:
        make_srd_from(k, 44, 40, S * D * 2, add=cfg["ystore"])

    src_pitch = cfg["src"][2]
    pro = cfg["pro"]
    if pro in ("ln", "ln2", "shift"):
        PB = 128 // LPR
    else:
        PB = 16 if (K * 2) % (LPR * 16) == 0 else 8
    chunk = LPR * PB
    ninstr = (K * 2) // chunk
    dwp = PB // 4
    nd = ninstr * dwp
    X = va.get(nd, 4)
    v_r = va.get(); v_c = va.get(); v_soff = va.get(); v_lw = va.get()
    lg = {8: 3, 16: 4}[LPR]
    k.e(f"v_lshrrev_b32 v{v_r}, {lg}, v{v_lane}")
    k.e(f"v_and_b32 v{v_c}, {LPR - 1}, v{v_lane}")
    k.e(f"s_mul_i32 s42, s3, {RPW}")
    k.e(f"v_add_u32 v{v_r}, s42, v{v_r}")
    k.e(f"v_mul_u32_u24 v{v_lw}, {P}, v{v_r}")
    k.e(f"v_lshl_add_u32 v{v_lw}, v{v_c}, {PB.bit_length() - 1}, v{v_lw}")
    k.e(f"v_add_u32 v{v_soff}, s6, v{v_r}")
    k.e(f"s_movk_i32 s42, {src_pitch}")
    k.e(f"v_mul_lo_u32 v{v_soff}, v{v_soff}, s42")
    k.e(f"v_lshl_add_u32 v{v_soff}, v{v_c}, {PB.bit_length() - 1}, v{v_soff}")
    ldmn = {8: "buffer_load_dwordx2", 16: "buffer_load_dwordx4"}[PB]
    src_idx = []
    if pro == "shift":
        shifts = [1, -1, 2, -2]
        v_sh = va.get()
        for i in range(ninstr):
            b0 = i * chunk
            q0 = b0 // 224
            q1 = (b0 + chunk - 1) // 224
            d0 = (-shifts[q0] * src_pitch + b0) & 0xffffffff
            if q0 == q1:
                k.e(f"v_add_u32 v{v_sh}, 0x{d0:x}, v{v_soff}")
            else:
                d1 = (-shifts[q1] * src_pitch + b0) & 0xffffffff
                cb_ = ((q1 * 224) - b0) // PB
                k.e(f"v_cmp_gt_u32 vcc, {cb_}, v{v_c}")
                k.e(f"v_mov_b32 v{v_t0}, 0x{d1:x}")
                k.e(f"v_mov_b32 v{v_t1}, 0x{d0:x}")
                k.e(f"v_cndmask_b32 v{v_sh}, v{v_t0}, v{v_t1}, vcc")
                k.e(f"v_add_u32 v{v_sh}, v{v_sh}, v{v_soff}")
            src_idx.append(k.e(f"{ldmn} v[{X + i * dwp}:{X + i * dwp + dwp - 1}], v{v_sh}, s[12:15], 0 offen"))
    else:
        for i in range(ninstr):
            src_idx.append(k.e(f"{ldmn} v[{X + i * dwp}:{X + i * dwp + dwp - 1}], v{v_soff}, s[12:15], 0 offen offset:{i * chunk}"))

    waves = cfg["waves"]
    variants = {}
    for w, spec in enumerate(waves):
        key = None if spec is None else (spec["b"], spec["m0"], spec["a"])
        variants.setdefault(key, []).append(w)

    maxb = max(spec["b"] for spec in waves if spec)
    depth = cfg.get("depth", KS)
    WF = va.get(maxb * depth * 4, 4)
    v_w = va.get()
    k.e(f"v_lshlrev_b32 v{v_w}, 4, v{v_lane}")
    k.e("s_mov_b32 s43, 0")
    firsts = [spec["t0"] if spec else 0 for spec in waves]
    for w in range(8):
        if firsts[w]:
            k.e(f"s_cmp_eq_u32 s3, {w}")
            k.e(f"s_cselect_b32 s43, {firsts[w]}, s43")
    k.e(f"s_mul_i32 s48, s5, {cfg['tiles_per_cb']}")
    k.e("s_add_u32 s48, s48, s43")
    k.e(f"s_mul_i32 s48, s48, {KS * 1024}")
    k.e(f"s_add_u32 s48, s48, 0x{cfg['wp_off']:x}")

    w_idx = {}
    def issue_w(j, s):
        slot = s % depth
        r = WF + (j * depth + slot) * 4
        off = (j * KS + s) * 1024
        hi_off = off & ~4095
        lo_off = off & 4095
        if hi_off:
            k.e(f"s_add_u32 s49, s48, 0x{hi_off:x}")
            sreg = "s49"
        else:
            sreg = "s48"
        w_idx[(j, s)] = k.e(f"buffer_load_dwordx4 v[{r}:{r + 3}], v{v_w}, s[8:11], {sreg} offen offset:{lo_off}")

    for s in range(min(depth, KS)):
        for j in range(maxb):
            issue_w(j, s)

    k.wait_vm(src_idx[-1])
    stamp()
    T = va.get(12)
    if pro in ("ln", "ln2"):
        emit_ln(k, X, nd, LPR, T)
    if pro == "ln2":
        if cfg.get("ystore") is not None:
            lab = k.newlabel("noy")
            k.e("s_cmp_lg_u32 s5, 0")
            k.e(f"s_cbranch_scc1 {lab}")
            stmn = {8: "buffer_store_dwordx2", 16: "buffer_store_dwordx4"}[PB]
            for i in range(ninstr):
                k.e(f"{stmn} v[{X + i * dwp}:{X + i * dwp + dwp - 1}], v{v_soff}, s[44:47], 0 offen offset:{i * chunk}")
            k.label(lab)
            k.e("s_nop 1")
        emit_ln(k, X, nd, LPR, T)
    wrmn = {8: "ds_write_b64", 16: "ds_write_b128"}[PB]
    for i in range(ninstr):
        k.e(f"{wrmn} v{v_lw}, v[{X + i * dwp}:{X + i * dwp + dwp - 1}] offset:{i * chunk}")
    k.e("s_waitcnt lgkmcnt(0)")
    stamp()
    k.e("s_barrier")
    stamp()

    dst_pitch = cfg["dst"][2]
    v_x = va.get()
    k.e(f"v_mul_u32_u24 v{v_x}, {P}, v{v_m}")
    k.e(f"v_lshl_add_u32 v{v_x}, v{v_g}, 4, v{v_x}")
    v_eo = va.get()
    k.e(f"s_movk_i32 s42, {dst_pitch}")
    k.e(f"v_mul_lo_u32 v{v_eo}, v{v_m}, s42")
    k.e(f"v_lshl_add_u32 v{v_eo}, v{v_g}, 3, v{v_eo}")

    vbase_after_common = va.n
    endlab = f"L_{name}_end"
    vlist = [(key, ws_) for key, ws_ in variants.items() if key is not None]
    for vi, (key, ws_) in enumerate(vlist):
        pass
    labs = {key: k.newlabel("var") for key, _ in vlist}
    for key, ws_ in vlist:
        for w in ws_:
            k.e(f"s_cmp_eq_u32 s3, {w}")
            k.e(f"s_cbranch_scc1 {labs[key]}")
    k.e(f"s_branch {endlab}")
    maxv = va.n
    for key, ws_ in vlist:
        b, m0, a = key
        va2 = VAlloc(vbase_after_common)
        k.label(labs[key])
        k.e("s_nop 4")
        ACC = va2.get(a * b * 4, 4)
        XF = va2.get(2 * a * 4, 4)
        for r in range(a * b * 4):
            k.e(f"v_mov_b32 v{ACC + r}, 0")
        RES = None
        nres = {"store": 0, "gelu": 0, "res1": 1, "res2": 2}[cfg["epi"]]
        if nres:
            RES = va2.get(a * b * 2 * nres, 2)
        k.e(f"s_mul_i32 s50, s6, {dst_pitch}")
        k.e(f"s_mul_i32 s51, s5, {cfg['TNcols'] * 2}")
        k.e("s_add_u32 s50, s50, s51")
        k.e(f"s_lshl_b32 s51, s43, 5")
        k.e("s_add_u32 s50, s50, s51")
        res_idx = []
        def tile_soff(i):
            o = (m0 + i) * 16 * dst_pitch
            if o == 0:
                return "s50"
            k.e(f"s_add_u32 s52, s50, {o}")
            return "s52"
        if nres:
            for i in range(a):
                sr = tile_soff(i)
                for j in range(b):
                    for q in range(nres):
                        r = RES + ((i * b + j) * nres + q) * 2
                        srdn = (20, 24)[q]
                        res_idx.append(k.e(f"buffer_load_dwordx2 v[{r}:{r + 1}], v{v_eo}, s[{srdn}:{srdn + 3}], {sr} offen offset:{j * 32}"))

        def issue_x(s):
            buf = s % 2
            idx = None
            for i in range(a):
                r = XF + (buf * a + i) * 4
                idx = k.e(f"ds_read_b128 v[{r}:{r + 3}], v{v_x} offset:{(m0 + i) * 16 * P + 64 * s}")
            return idx
        xi = issue_x(0)
        for s in range(KS):
            nxt = issue_x(s + 1) if s + 1 < KS else None
            k.wait_lg(xi)
            for j in range(b):
                if (j, s) in w_idx:
                    k.wait_vm(w_idx[(j, s)])
            buf = s % 2
            for j in range(b):
                wr = WF + (j * depth + (s % depth)) * 4
                for i in range(a):
                    xr = XF + (buf * a + i) * 4
                    ar = ACC + (i * b + j) * 4
                    k.e(f"v_mfma_f32_16x16x32_bf16 v[{ar}:{ar + 3}], v[{wr}:{wr + 3}], v[{xr}:{xr + 3}], v[{ar}:{ar + 3}]")
            if s + depth < KS:
                for j in range(b):
                    issue_w(j, s + depth)
            xi = nxt
        stamp_save = stamp_n[0]
        stamp()
        TE = va2.get(8)
        if res_idx:
            k.wait_vm(res_idx[-1])
        for i in range(a):
            sr = tile_soff(i)
            for j in range(b):
                ar = ACC + (i * b + j) * 4
                p0, p1 = TE, TE + 1
                k.e(f"v_cvt_pk_bf16_f32 v{p0}, v{ar}, v{ar + 1}")
                k.e(f"v_cvt_pk_bf16_f32 v{p1}, v{ar + 2}, v{ar + 3}")
                if cfg["epi"] == "gelu":
                    emit_gelu_pair(k, p0, TE + 2)
                    emit_gelu_pair(k, p1, TE + 2)
                elif nres:
                    for q in range(nres):
                        r = RES + ((i * b + j) * nres + q) * 2
                        for hq, pk in enumerate((p0, p1)):
                            lo, hi, rl, rh = TE + 2, TE + 3, TE + 4, TE + 5
                            k.e(f"v_lshlrev_b32 v{lo}, 16, v{pk}")
                            k.e(f"v_and_b32 v{hi}, 0xffff0000, v{pk}")
                            k.e(f"v_lshlrev_b32 v{rl}, 16, v{r + hq}")
                            k.e(f"v_and_b32 v{rh}, 0xffff0000, v{r + hq}")
                            k.e(f"v_add_f32 v{lo}, v{lo}, v{rl}")
                            k.e(f"v_add_f32 v{hi}, v{hi}, v{rh}")
                            k.e(f"v_cvt_pk_bf16_f32 v{pk}, v{lo}, v{hi}")
                if cfg.get("perturb"):
                    for pk in (p0, p1):
                        lo, hi = TE + 2, TE + 3
                        k.e(f"v_lshlrev_b32 v{lo}, 16, v{pk}")
                        k.e(f"v_and_b32 v{hi}, 0xffff0000, v{pk}")
                        k.e(f"v_mul_f32 v{lo}, {f32hex(cfg['perturb'])}, v{lo}")
                        k.e(f"v_mul_f32 v{hi}, {f32hex(cfg['perturb'])}, v{hi}")
                        k.e(f"v_cvt_pk_bf16_f32 v{pk}, v{lo}, v{hi}")
                k.e(f"buffer_store_dwordx2 v[{p0}:{p1}], v{v_eo}, s[16:19], {sr} offen offset:{j * 32}")
        if PROF:
            k.e("s_waitcnt vmcnt(0)")
        stamp()
        k.e(f"s_branch {endlab}")
        stamp_n[0] = stamp_save
        maxv = max(maxv, va2.n)
    k.label(endlab)
    if PROF:
        lab = k.newlabel("noprof")
        k.e(f"s_cmp_lg_u32 s2, {cfg.get('prof_wg', 0)}")
        k.e(f"s_cbranch_scc1 {lab}")
        k.e("s_cmp_lg_u32 s3, 0")
        k.e(f"s_cbranch_scc1 {lab}")
        k.e(f"s_load_dwordx2 s[66:67], s[0:1], {ARG['dbg']}")
        k.e("s_waitcnt lgkmcnt(0)")
        make_srd_from(k, 60, 66, 256)
        k.e("v_mov_b32 v1, 0")
        for i in range(8):
            k.e(f"v_mov_b32 v2, s{70 + 2 * i}")
            k.e(f"buffer_store_dword v2, v1, s[60:63], 0 offen offset:{4 * i}")
        k.label(lab)
    k.label(done)
    k.e("s_endpgm")
    lds = TM * P
    return k, dict(grid=nwg, block=512, lds=lds, nvgpr=maxv, nsgpr=96 if PROF else 64)


def waves_even(ntiles, a, m0=0):
    base = ntiles // 8
    extra = ntiles % 8
    counts = [base + (1 if w < extra else 0) for w in range(8)]
    out = []
    t = 0
    for w in range(8):
        if counts[w] == 0:
            out.append(None)
        else:
            out.append(dict(b=counts[w], t0=t, m0=m0, a=a))
        t += counts[w]
    return out


def phase_cfgs(L):
    xin = ("A_x", 0, D * 2, S * D * 2) if L == 0 else (None, WS.XB0, D * 2, S * D * 2)
    g = lambda n: getattr(WS, f"{n}{L}")
    buf = lambda n, cols=D: (None, g(n), cols * 2, S * cols * 2)
    cfgs = []
    cfgs.append(("qkv", dict(K=448, TM=64, NCB=8, tiles_per_cb=12, wp_off=WS.WP_QKV, waves=waves_even(12, 4),
                             pro="ln", src=xin, epi="store", dst=(None, g("QKV"), 1536 * 2, S * 1536 * 2), TNcols=192)))
    cfgs.append(("wo", dict(K=448, TM=32, NCB=4, tiles_per_cb=7, wp_off=WS.WP_WO, waves=waves_even(7, 2),
                            pro="plain", src=buf("O"), epi="res1", res1=xin, dst=buf("XA"), TNcols=112)))
    cfgs.append(("w1", dict(K=448, TM=32, NCB=4, tiles_per_cb=7, wp_off=WS.WP_W1, waves=waves_even(7, 2),
                            pro="ln2", src=buf("XA"), ystore=g("Y"), epi="gelu", dst=buf("H"), TNcols=112)))
    cfgs.append(("w2", dict(K=448, TM=32, NCB=4, tiles_per_cb=7, wp_off=WS.WP_W2, waves=waves_even(7, 2),
                            pro="shift", src=buf("H"), epi="res1", res1=buf("Y"), dst=buf("X1"), TNcols=112)))
    cfgs.append(("w3", dict(K=448, TM=64, NCB=7, tiles_per_cb=16, wp_off=WS.WP_W3, waves=waves_even(16, 4),
                            pro="ln", src=buf("X1"), epi="gelu", dst=buf("G", F), TNcols=256)))
    dst6 = buf("XB") if L == 0 else ("out", 0, D * 2, S * D * 2)
    cfgs.append(("w4", dict(K=1792, TM=32, NCB=4, tiles_per_cb=7, wp_off=WS.WP_W4, waves=waves_even(7, 2),
                            pro="plain", src=buf("G", F), epi="res2", res1=buf("X1"), res2=buf("XA"), dst=dst6,
                            TNcols=112, depth=16)))
    return cfgs


PQ = 392
SCALE = f32hex(28 ** -0.5)
LOG2E = f32hex(1.4426950408889634)


def emit_attention(k, va, lds_base, s_row0, s_hg, srd_out, sreg_tmp):
    v_u = va.get(); v_hh = va.get(); v_t = va.get(); v_aq = va.get(); v_ak = va.get(); v_av = va.get()
    t0 = va.get(); t1 = va.get(); t2 = va.get(); t3 = va.get()
    Q = va.get(14, 2); K0 = va.get(14, 2); K1 = va.get(14, 2)
    k.e(f"v_and_b32 v{v_u}, 3, v0")
    k.e(f"v_bfe_u32 v{v_hh}, v0, 2, 1")
    k.e(f"v_lshrrev_b32 v{v_t}, 3, v0")
    k.e(f"v_mul_u32_u24 v{v_aq}, {PQ}, v{v_t}")
    k.e(f"v_mul_u32_u24 v{t0}, 56, v{v_hh}")
    k.e(f"v_add_u32 v{v_aq}, v{v_aq}, v{t0}")
    k.e(f"v_add_u32 v{v_aq}, {lds_base + 16 * PQ}, v{v_aq}")
    k.e(f"v_mul_u32_u24 v{t0}, {4 * PQ}, v{v_u}")
    k.e(f"v_sub_u32 v{v_ak}, v{v_aq}, v{t0}")
    k.e(f"v_add_u32 v{v_ak}, 0x{(128 - 2 * PQ) & 0xffffffff:x}, v{v_ak}")
    k.e(f"v_lshlrev_b32 v{t0}, 4, v{v_u}")
    k.e(f"v_add_u32 v{v_av}, v{v_aq}, v{t0}")
    k.e(f"v_add_u32 v{v_av}, 0x{(256 - 14 * PQ) & 0xffffffff:x}, v{v_av}")
    for i in range(7):
        k.e(f"ds_read_b64 v[{Q + 2 * i}:{Q + 2 * i + 1}], v{v_aq} offset:{8 * i}")
    for i in range(7):
        k.e(f"ds_read_b64 v[{K0 + 2 * i}:{K0 + 2 * i + 1}], v{v_ak} offset:{2 * PQ + 8 * i}")
    for i in range(7):
        k.e(f"ds_read_b64 v[{K1 + 2 * i}:{K1 + 2 * i + 1}], v{v_ak} offset:{8 * i}")
    V = va.get(32, 2)
    for j in range(8):
        for h2 in range(2):
            k.e(f"ds_read_b64 v[{V + 4 * j + 2 * h2}:{V + 4 * j + 2 * h2 + 1}], v{v_av} offset:{(14 - 2 * j) * PQ + 8 * h2}")
    l0 = va.get(); l1 = va.get()
    k.e(f"v_mov_b32 v{l0}, 0")
    k.e(f"v_mov_b32 v{l1}, 0")
    k.e("s_waitcnt lgkmcnt(0)")
    for i in range(14):
        k.e(f"v_dot2_f32_bf16 v{l0}, v{Q + i}, v{K0 + i}, v{l0}")
        k.e(f"v_dot2_f32_bf16 v{l1}, v{Q + i}, v{K1 + i}, v{l1}")
    k.e(f"v_cvt_pk_bf16_f32 v{t0}, v{l0}, v{l1}")
    k.e(f"v_lshlrev_b32 v{l0}, 16, v{t0}")
    k.e(f"v_and_b32 v{l1}, 0xffff0000, v{t0}")
    k.e(f"v_mul_f32 v{l0}, {SCALE}, v{l0}")
    k.e(f"v_mul_f32 v{l1}, {SCALE}, v{l1}")
    k.e(f"v_cvt_pk_bf16_f32 v{t0}, v{l0}, v{l1}")
    k.e(f"v_lshlrev_b32 v{l0}, 16, v{t0}")
    k.e(f"v_and_b32 v{l1}, 0xffff0000, v{t0}")
    k.e(f"v_add_u32 v{t1}, {s_row0}, v{v_t}")
    k.e(f"v_lshlrev_b32 v{t2}, 2, v{v_u}")
    k.e(f"v_sub_u32 v{t1}, v{t1}, v{t2}")
    k.e(f"v_mov_b32 v{t3}, 0xce6e6b28")
    k.e(f"v_cmp_gt_i32 vcc, 0, v{t1}")
    k.e(f"v_cndmask_b32 v{l0}, v{l0}, v{t3}, vcc")
    k.e(f"v_cmp_gt_i32 vcc, 2, v{t1}")
    k.e(f"v_cndmask_b32 v{l1}, v{l1}, v{t3}, vcc")
    k.e(f"v_max_f32 v{t0}, v{l0}, v{l1}")
    k.e(f"v_max_f32_dpp v{t1}, v{t0}, v{t0} quad_perm:[1,0,3,2] row_mask:0xf bank_mask:0xf")
    k.e(f"v_max_f32_dpp v{t0}, v{t1}, v{t1} quad_perm:[2,3,0,1] row_mask:0xf bank_mask:0xf")
    k.e(f"v_sub_f32 v{l0}, v{l0}, v{t0}")
    k.e(f"v_sub_f32 v{l1}, v{l1}, v{t0}")
    k.e(f"v_mul_f32 v{l0}, {LOG2E}, v{l0}")
    k.e(f"v_mul_f32 v{l1}, {LOG2E}, v{l1}")
    k.e(f"v_exp_f32 v{l0}, v{l0}")
    k.e(f"v_exp_f32 v{l1}, v{l1}")
    k.e(f"v_add_f32 v{t0}, v{l0}, v{l1}")
    k.e(f"v_add_f32_dpp v{t1}, v{t0}, v{t0} quad_perm:[1,0,3,2] row_mask:0xf bank_mask:0xf")
    k.e(f"v_add_f32_dpp v{t0}, v{t1}, v{t1} quad_perm:[2,3,0,1] row_mask:0xf bank_mask:0xf")
    k.e(f"v_rcp_f32 v{t0}, v{t0}")
    k.e(f"v_mul_f32 v{l0}, v{l0}, v{t0}")
    k.e(f"v_mul_f32 v{l1}, v{l1}, v{t0}")
    k.e(f"v_cvt_pk_bf16_f32 v{t0}, v{l0}, v{l1}")
    PP = va.get(4)
    for uu in range(4):
        k.e(f"v_mov_b32_dpp v{PP + uu}, v{t0} quad_perm:[{uu},{uu},{uu},{uu}] row_mask:0xf bank_mask:0xf")
    OA = va.get(8)
    for d in range(8):
        k.e(f"v_mov_b32 v{OA + d}, 0")
    k.e(f"s_mov_b32 {sreg_tmp[0]}, 0x05040100")
    k.e(f"s_mov_b32 {sreg_tmp[1]}, 0x07060302")
    for uu in range(4):
        ja, jb = 2 * uu, 2 * uu + 1
        for d in range(4):
            A = V + 4 * ja + d; B = V + 4 * jb + d
            k.e(f"v_perm_b32 v{t0}, v{B}, v{A}, {sreg_tmp[0]}")
            k.e(f"v_perm_b32 v{t1}, v{B}, v{A}, {sreg_tmp[1]}")
            k.e(f"v_dot2_f32_bf16 v{OA + 2 * d}, v{t0}, v{PP + uu}, v{OA + 2 * d}")
            k.e(f"v_dot2_f32_bf16 v{OA + 2 * d + 1}, v{t1}, v{PP + uu}, v{OA + 2 * d + 1}")
    OP = va.get(4, 2)
    for d in range(4):
        k.e(f"v_cvt_pk_bf16_f32 v{OP + d}, v{OA + 2 * d}, v{OA + 2 * d + 1}")
    k.e(f"v_add_u32 v{t1}, {s_row0}, v{v_t}")
    k.e(f"v_mul_u32_u24 v{t1}, 896, v{t1}")
    k.e(f"v_lshl_add_u32 v{t2}, {s_hg}, 1, v{v_hh}")
    k.e(f"v_mul_u32_u24 v{t2}, 56, v{t2}")
    k.e(f"v_lshlrev_b32 v{t3}, 4, v{v_u}")
    k.e(f"v_add3_u32 v{t1}, v{t1}, v{t2}, v{t3}")
    k.e(f"buffer_store_dwordx2 v[{OP}:{OP + 1}], v{t1}, s[{srd_out}:{srd_out + 3}], 0 offen")
    k.e(f"v_cmp_gt_u32 vcc, 3, v{v_u}")
    k.e(f"s_and_saveexec_b64 {sreg_tmp[2]}, vcc")
    k.e(f"buffer_store_dwordx2 v[{OP + 2}:{OP + 3}], v{t1}, s[{srd_out}:{srd_out + 3}], 0 offen offset:8")
    k.e(f"s_mov_b64 exec, {sreg_tmp[2]}")


def gen_attn(name, L):
    k = Kern(name)
    nwg = 32 * 8
    done = f"L_{name}_done"
    k.e(f"s_cmp_ge_u32 s2, {nwg}")
    k.e(f"s_cbranch_scc1 {done}")
    k.e(f"s_load_dwordx2 s[40:41], s[0:1], {ARG['ws']}")
    k.e("s_lshr_b32 s4, s2, 3")
    k.e("s_and_b32 s5, s2, 7")
    k.e("s_lshl_b32 s6, s4, 6")
    k.e("s_waitcnt lgkmcnt(0)")
    make_srd_from(k, 12, 40, S * 3072, add=getattr(WS, f"QKV{L}"))
    make_srd_from(k, 16, 40, S * D * 2, add=getattr(WS, f"O{L}"))
    va = VAlloc(1)
    vp = va.get(); vrow = va.get(); vc = va.get(); vg = va.get(); vl = va.get(); vt = va.get()
    ST = va.get(16, 4)
    k.e(f"s_mul_i32 s7, s5, 384")
    k.e(f"s_sub_u32 s42, s6, 16")
    m, sh = magic_div(24, 2048)
    k.e(f"s_mov_b32 s43, 0x{m:x}")
    idx = []
    for i in range(4):
        k.e(f"v_add_u32 v{vp}, {512 * i}, v0")
        k.e(f"v_mul_hi_u32 v{vrow}, v{vp}, s43")
        if sh:
            k.e(f"v_lshrrev_b32 v{vrow}, {sh}, v{vrow}")
        k.e(f"v_mul_u32_u24 v{vt}, 24, v{vrow}")
        k.e(f"v_sub_u32 v{vc}, v{vp}, v{vt}")
        k.e(f"v_add_u32 v{vg}, s42, v{vrow}")
        k.e(f"v_mul_lo_u32 v{vg}, v{vg}, 3072" if False else f"s_movk_i32 s44, 3072")
        k.e(f"v_mul_lo_u32 v{vg}, v{vg}, s44")
        k.e(f"v_lshl_add_u32 v{vg}, v{vc}, 4, v{vg}")
        k.e(f"v_add_u32 v{vg}, s7, v{vg}")
        if i == 3:
            k.e(f"v_cmp_gt_u32 vcc, 1920, v{vp}")
            k.e(f"v_mov_b32 v{vt}, -1")
            k.e(f"v_cndmask_b32 v{vg}, v{vt}, v{vg}, vcc")
        idx.append(k.e(f"buffer_load_dwordx4 v[{ST + 4 * i}:{ST + 4 * i + 3}], v{vg}, s[12:15], 0 offen"))
    for i in range(4):
        k.e(f"v_add_u32 v{vp}, {512 * i}, v0")
        k.e(f"v_mul_hi_u32 v{vrow}, v{vp}, s43")
        if sh:
            k.e(f"v_lshrrev_b32 v{vrow}, {sh}, v{vrow}")
        k.e(f"v_mul_u32_u24 v{vt}, 24, v{vrow}")
        k.e(f"v_sub_u32 v{vc}, v{vp}, v{vt}")
        k.e(f"v_mul_u32_u24 v{vl}, {PQ}, v{vrow}")
        k.e(f"v_lshl_add_u32 v{vl}, v{vc}, 4, v{vl}")
        k.wait_vm(idx[i])
        if i == 3:
            k.e(f"v_cmp_gt_u32 vcc, 1920, v{vp}")
            k.e("s_and_saveexec_b64 s[46:47], vcc")
        k.e(f"ds_write_b128 v{vl}, v[{ST + 4 * i}:{ST + 4 * i + 3}]")
        if i == 3:
            k.e("s_mov_b64 exec, s[46:47]")
    k.e("s_waitcnt lgkmcnt(0)")
    k.e("s_barrier")
    emit_attention(k, va, 0, "s6", "s5", 16, ("s44", "s45", "s[46:47]"))
    k.label(done)
    k.e("s_endpgm")
    return k, dict(grid=nwg, block=512, lds=80 * PQ, nvgpr=va.n, nsgpr=64)


WS.STATS0 = ws_alloc(S * 8)
WS.STATS1 = ws_alloc(S * 8)


def emit_stats(k, X, nd, lpr, T, mode):
    A, B, mb, rv, s1, s2, t0, t1, t2, t3 = [T + i for i in range(10)]
    k.e(f"v_mov_b32 v{s1}, 0")
    k.e(f"v_mov_b32 v{s2}, 0")
    k.e(f"v_mov_b32 v{t2}, 0")
    k.e(f"v_mov_b32 v{t3}, 0")
    for d in range(nd):
        a1 = (s1, t2)[d & 1]
        a2 = (s2, t3)[d & 1]
        k.e(f"v_dot2_f32_bf16 v{a1}, v{X + d}, s28, v{a1}")
        k.e(f"v_dot2_f32_bf16 v{a2}, v{X + d}, v{X + d}, v{a2}")
    k.e(f"v_add_f32 v{s1}, v{s1}, v{t2}")
    k.e(f"v_add_f32 v{s2}, v{s2}, v{t3}")
    emit_row_reduce(k, s1, t0, lpr)
    emit_row_reduce(k, s2, t0, lpr)
    k.e(f"v_mul_f32 v{s1}, {INV448}, v{s1}")
    k.e(f"v_mul_f32 v{s2}, {INV448}, v{s2}")
    k.e(f"v_fma_f32 v{s2}, -v{s1}, v{s1}, v{s2}")
    k.e(f"v_max_f32 v{s2}, 0, v{s2}")
    emit_bf16_round(k, mb, s1, t0)
    emit_bf16_round(k, t1, s2, t0)
    k.e(f"v_add_f32 v{t1}, {EPS}, v{t1}")
    emit_bf16_round(k, t1, t1, t0)
    k.e(f"v_sqrt_f32 v{t1}, v{t1}")
    emit_bf16_round(k, t1, t1, t0)
    k.e(f"v_rcp_f32 v{rv}, v{t1}")
    k.e(f"v_fma_f32 v{t0}, -v{t1}, v{rv}, 2.0")
    k.e(f"v_mul_f32 v{rv}, v{rv}, v{t0}")
    if mode == "ln":
        k.e(f"v_mov_b32 v{A}, v{rv}")
        k.e(f"v_mul_f32 v{B}, v{mb}, v{rv}")
    else:
        k.e(f"v_sub_f32 v{t2}, v{s1}, v{mb}")
        k.e(f"v_mul_f32 v{t2}, v{t2}, v{rv}")
        emit_bf16_round(k, t2, t2, t0)
        k.e(f"v_mul_f32 v{t3}, v{rv}, v{rv}")
        k.e(f"v_mul_f32 v{t3}, v{t3}, v{s2}")
        emit_bf16_round(k, t3, t3, t0)
        k.e(f"v_add_f32 v{t3}, {EPS}, v{t3}")
        emit_bf16_round(k, t3, t3, t0)
        k.e(f"v_sqrt_f32 v{t3}, v{t3}")
        emit_bf16_round(k, t3, t3, t0)
        k.e(f"v_rcp_f32 v{t1}, v{t3}")
        k.e(f"v_fma_f32 v{t0}, -v{t3}, v{t1}, 2.0")
        k.e(f"v_mul_f32 v{t1}, v{t1}, v{t0}")
        k.e(f"v_mul_f32 v{A}, v{rv}, v{t1}")
        k.e(f"v_fma_f32 v{B}, v{mb}, v{rv}, v{t2}")
        k.e(f"v_mul_f32 v{B}, v{B}, v{t1}")


def gen_gemm2(name, cfg):
    K = cfg["K"]; KS = K // 32; TM = cfg["TM"]; NCB = cfg["NCB"]
    NRB = S // TM
    halo = cfg.get("halo", 0)
    ROWS = TM + halo
    P = K * 2 + 32
    LPR = 512 // TM
    RPW = 64 // LPR
    pro = cfg["pro"]
    has_ln = pro in ("ln", "ln2")
    fused_attn = cfg.get("attn", False)
    LSTAT = 0
    LQKV = ROWS * 8
    LX = LQKV + (80 * PQ if fused_attn else 0)
    LX = (LX + 15) // 16 * 16
    k = Kern(name)
    nwg = NRB * NCB
    done = f"L_{name}_done"
    PROF = cfg.get("prof", False)
    stamp_n = [0]
    def stamp():
        if PROF:
            i = stamp_n[0]
            k.e(f"s_memtime s[{70 + 2 * i}:{71 + 2 * i}]")
            stamp_n[0] += 1
    k.e(f"s_cmp_ge_u32 s2, {nwg}")
    k.e(f"s_cbranch_scc1 {done}")
    stamp()
    k.e("s_load_dwordx4 s[32:35], s[0:1], 0")
    k.e(f"s_load_dwordx4 s[36:39], s[0:1], {ARG['out']}")
    k.e(f"s_load_dwordx2 s[40:41], s[0:1], {ARG['ws']}")
    va = VAlloc(1)
    v_lane = va.get(); v_m = va.get(); v_g = va.get(); v_t0 = va.get(); v_t1 = va.get()
    _waves = cfg["waves"]
    _maxb = max(spec["b"] for spec in _waves if spec)
    _depth = cfg.get("depth", KS)
    v_w = va.get(); v_x = va.get(); v_eo = va.get(); v_sm = va.get()
    ONES = va.get(4, 4) if has_ln else None
    WF = va.get(_maxb * _depth * 4, 4)
    vbase = va.n
    k.e(f"v_lshrrev_b32 v{v_t0}, 6, v0")
    k.e(f"v_and_b32 v{v_lane}, 63, v0")
    k.e(f"v_readfirstlane_b32 s3, v{v_t0}")
    if cfg.get("xcdmap", True) and NRB % 8 == 0:
        k.e("s_lshr_b32 s7, s2, 3")
        s_divmod(k, "s4", "s5", "s7", NCB, nwg, "s42")
        k.e("s_and_b32 s7, s2, 7")
        k.e(f"s_mul_i32 s7, s7, {NRB // 8}")
        k.e("s_add_u32 s4, s4, s7")
    else:
        s_divmod(k, "s4", "s5", "s2", NCB, nwg, "s42")
    k.e(f"s_mul_i32 s6, s4, {TM}")
    k.e(f"v_and_b32 v{v_m}, 15, v{v_lane}")
    k.e(f"v_lshrrev_b32 v{v_g}, 4, v{v_lane}")
    k.e("s_mov_b32 s28, 0x3f803f80")
    k.e(f"s_mov_b32 s29, {GELU_K}")
    k.e(f"s_mov_b32 s30, {GELU_C1}")
    k.e("s_waitcnt lgkmcnt(0)")
    stamp()

    def srd(sdst, spec):
        slot, wsoff, pitch, nbytes = spec
        if slot == "A_x":
            make_srd_from(k, sdst, 32, nbytes)
        elif slot == "out":
            make_srd_from(k, sdst, 36, nbytes)
        else:
            make_srd_from(k, sdst, 40, nbytes, add=wsoff)
    make_srd_from(k, 8, 40, WS_BYTES)
    srd(12, cfg["src"])
    srd(16, cfg["dst"])
    if cfg.get("res1"):
        srd(20, cfg["res1"])
    if cfg.get("res2"):
        srd(24, cfg["res2"])
    if cfg.get("stats") is not None:
        make_srd_from(k, 44, 40, S * 8, add=cfg["stats"])

    src_pitch = cfg["src"][2]
    if pro in ("ln", "ln2", "shift"):
        PB = 128 // LPR
    else:
        PB = 16 if (K * 2) % (LPR * 16) == 0 else 8
    chunk = LPR * PB
    ninstr = (K * 2) // chunk
    dwp = PB // 4
    nd = ninstr * dwp
    npass = 2 if halo else 1
    X = va.get(nd * npass, 4)
    v_r = va.get(); v_c = va.get(); v_soff = va.get(); v_lw = va.get()
    lg = {8: 3, 16: 4}[LPR]
    k.e(f"v_lshrrev_b32 v{v_r}, {lg}, v{v_lane}")
    k.e(f"v_and_b32 v{v_c}, {LPR - 1}, v{v_lane}")
    k.e(f"s_mul_i32 s42, s3, {RPW}")
    k.e(f"v_add_u32 v{v_r}, s42, v{v_r}")
    k.e(f"v_mul_u32_u24 v{v_lw}, {P}, v{v_r}")
    k.e(f"v_lshl_add_u32 v{v_lw}, v{v_c}, {PB.bit_length() - 1}, v{v_lw}")
    if LX:
        k.e(f"v_add_u32 v{v_lw}, {LX}, v{v_lw}")
    k.e(f"v_add_u32 v{v_soff}, s6, v{v_r}")
    if halo:
        k.e(f"v_subrev_u32 v{v_soff}, {halo}, v{v_soff}")
    k.e(f"s_movk_i32 s42, {src_pitch}")
    k.e(f"v_mul_lo_u32 v{v_soff}, v{v_soff}, s42")
    k.e(f"v_lshl_add_u32 v{v_soff}, v{v_c}, {PB.bit_length() - 1}, v{v_soff}")
    ldmn = {8: "buffer_load_dwordx2", 16: "buffer_load_dwordx4"}[PB]
    src_idx = []
    if pro == "shift":
        shifts = [1, -1, 2, -2]
        v_sh = va.get()
        for i in range(ninstr):
            b0 = i * chunk
            q0 = b0 // 224
            q1 = (b0 + chunk - 1) // 224
            d0 = (-shifts[q0] * src_pitch + b0) & 0xffffffff
            if q0 == q1:
                k.e(f"v_add_u32 v{v_sh}, 0x{d0:x}, v{v_soff}")
            else:
                d1 = (-shifts[q1] * src_pitch + b0) & 0xffffffff
                cb_ = ((q1 * 224) - b0) // PB
                k.e(f"v_cmp_gt_u32 vcc, {cb_}, v{v_c}")
                k.e(f"v_mov_b32 v{v_t0}, 0x{d1:x}")
                k.e(f"v_mov_b32 v{v_t1}, 0x{d0:x}")
                k.e(f"v_cndmask_b32 v{v_sh}, v{v_t0}, v{v_t1}, vcc")
                k.e(f"v_add_u32 v{v_sh}, v{v_sh}, v{v_soff}")
            src_idx.append(k.e(f"{ldmn} v[{X + i * dwp}:{X + i * dwp + dwp - 1}], v{v_sh}, s[12:15], 0 offen"))
    else:
        for i in range(ninstr):
            src_idx.append(k.e(f"{ldmn} v[{X + i * dwp}:{X + i * dwp + dwp - 1}], v{v_soff}, s[12:15], 0 offen offset:{i * chunk}"))
    if halo:
        v_soff2 = va.get()
        k.e(f"v_add_u32 v{v_soff2}, {TM * src_pitch}, v{v_soff}")
        for i in range(ninstr):
            src_idx.append(k.e(f"{ldmn} v[{X + nd + i * dwp}:{X + nd + i * dwp + dwp - 1}], v{v_soff2}, s[12:15], 0 offen offset:{i * chunk}"))

    waves = cfg["waves"]
    maxb = max(spec["b"] for spec in waves if spec)
    depth = cfg.get("depth", KS)
    k.e(f"v_lshlrev_b32 v{v_w}, 4, v{v_lane}")
    k.e("s_mov_b32 s43, 0")
    for w in range(8):
        if waves[w] and waves[w]["t0"]:
            k.e(f"s_cmp_eq_u32 s3, {w}")
            k.e(f"s_cselect_b32 s43, {waves[w]['t0']}, s43")
    k.e(f"s_mul_i32 s48, s5, {cfg['tiles_per_cb']}")
    k.e("s_add_u32 s48, s48, s43")
    k.e(f"s_mul_i32 s48, s48, {KS * 1024}")
    k.e(f"s_add_u32 s48, s48, 0x{cfg['wp_off']:x}")
    w_idx = {}
    def issue_w(j, s):
        slot = s % depth
        r = WF + (j * depth + slot) * 4
        off = (j * KS + s) * 1024
        hi_off = off & ~4095
        lo_off = off & 4095
        if hi_off:
            k.e(f"s_add_u32 s49, s48, 0x{hi_off:x}")
            sreg = "s49"
        else:
            sreg = "s48"
        w_idx[(j, s)] = k.e(f"buffer_load_dwordx4 v[{r}:{r + 3}], v{v_w}, s[8:11], {sreg} offen offset:{lo_off}")
    import os
    WLATE = os.environ.get("WLATE")
    if cfg.get("xfirst", True) and not WLATE:
        k.e("s_barrier")
    if not WLATE:
        for s in range(min(depth, KS)):
            for j in range(maxb):
                issue_w(j, s)

    k.wait_vm(src_idx[ninstr - 1])
    stamp()
    if WLATE:
        for s in range(min(depth, KS)):
            for j in range(maxb):
                issue_w(j, s)
    T = va.get(10, 2)
    def stats_store(Tb, row_reg_lds):
        pass
    if has_ln:
        emit_stats(k, X, nd, LPR, T, pro)
        v_sa = va.get()
        k.e(f"v_lshlrev_b32 v{v_sa}, 3, v{v_r}")
        k.e(f"ds_write_b64 v{v_sa}, v[{T}:{T + 1}] offset:{LSTAT}") if T % 2 == 0 else None
        assert T % 2 == 0
        if cfg.get("stats") is not None:
            lab = k.newlabel("nost")
            k.e("s_cmp_lg_u32 s5, 0")
            k.e(f"s_cbranch_scc1 {lab}")
            v_gs = va.get()
            k.e(f"v_add_u32 v{v_gs}, s6, v{v_r}")
            k.e(f"v_lshlrev_b32 v{v_gs}, 3, v{v_gs}")
            k.e(f"buffer_store_dwordx2 v[{T + 2}:{T + 3}], v{v_gs}, s[44:47], 0 offen")
            k.label(lab)
            k.e("s_nop 1")
    wrmn = {8: "ds_write_b64", 16: "ds_write_b128"}[PB]
    for i in range(ninstr):
        k.e(f"{wrmn} v{v_lw}, v[{X + i * dwp}:{X + i * dwp + dwp - 1}] offset:{i * chunk}")
    if halo:
        nw2 = halo // RPW
        lab = k.newlabel("nohalo")
        k.e(f"s_cmp_ge_u32 s3, {nw2}")
        k.e(f"s_cbranch_scc1 {lab}")
        k.wait_vm(src_idx[-1])
        if has_ln:
            emit_stats(k, X + nd, nd, LPR, T, pro)
            k.e(f"ds_write_b64 v{v_sa}, v[{T}:{T + 1}] offset:{LSTAT + TM * 8}")
        for i in range(ninstr):
            k.e(f"{wrmn} v{v_lw}, v[{X + nd + i * dwp}:{X + nd + i * dwp + dwp - 1}] offset:{TM * P + i * chunk}")
        k.label(lab)
        k.e("s_nop 1")
    k.e("s_waitcnt lgkmcnt(0)")
    stamp()
    k.e("s_barrier")
    stamp()

    dst_pitch = cfg["dst"][2]
    k.e(f"v_mul_u32_u24 v{v_x}, {P}, v{v_m}")
    k.e(f"v_lshl_add_u32 v{v_x}, v{v_g}, 4, v{v_x}")
    if LX:
        k.e(f"v_add_u32 v{v_x}, {LX}, v{v_x}")
    v_x2 = None
    k.e(f"s_movk_i32 s42, {dst_pitch}")
    k.e(f"v_mul_lo_u32 v{v_eo}, v{v_m}, s42")
    k.e(f"v_lshl_add_u32 v{v_eo}, v{v_g}, 3, v{v_eo}")
    if has_ln:
        for r in range(4):
            k.e(f"v_mov_b32 v{ONES + r}, s28")
    k.e(f"v_lshlrev_b32 v{v_sm}, 3, v{v_m}")

    endlab = f"L_{name}_end"
    variants = {}
    for w, spec in enumerate(waves):
        key = None if spec is None else (spec["b"], spec["m0"], spec["a"])
        variants.setdefault(key, []).append(w)
    vlist = [(key, ws_) for key, ws_ in variants.items() if key is not None]
    labs = {key: k.newlabel("var") for key, _ in vlist}
    for key, ws_ in vlist:
        for w in ws_:
            k.e(f"s_cmp_eq_u32 s3, {w}")
            k.e(f"s_cbranch_scc1 {labs[key]}")
    k.e(f"s_branch {endlab}")
    maxv = va.n
    for key, ws_ in vlist:
        b, m0, a = key
        va2 = VAlloc(vbase)
        k.label(labs[key])
        k.e("s_nop 4")
        ACC = va2.get(a * b * 4, 4)
        XF = va2.get(2 * a * 4, 4)
        CS = va2.get(b * 4, 4) if has_ln else None
        for r in range(a * b * 4):
            k.e(f"v_mov_b32 v{ACC + r}, 0")
        if has_ln:
            for r in range(b * 4):
                k.e(f"v_mov_b32 v{CS + r}, 0")
        RES = None
        nres = {"store": 0, "gelu": 0, "res1": 1, "res2": 2, "resln": 1, "attn": 0}[cfg["epi"]]
        if nres:
            RES = va2.get(a * b * 2 * nres, 2)
        k.e(f"s_mul_i32 s50, s6, {dst_pitch}")
        k.e(f"s_mul_i32 s51, s5, {cfg['TNcols'] * 2}")
        k.e("s_add_u32 s50, s50, s51")
        k.e(f"s_lshl_b32 s51, s43, 5")
        k.e("s_add_u32 s50, s50, s51")
        res_idx = []
        def tile_soff(i):
            o = (m0 + i) * 16 * dst_pitch - halo * dst_pitch
            if o == 0:
                return "s50"
            k.e(f"s_add_u32 s52, s50, {o}")
            return "s52"
        if nres:
            for i in range(a):
                sr = tile_soff(i)
                for j in range(b):
                    for q in range(nres):
                        r = RES + ((i * b + j) * nres + q) * 2
                        srdn = (20, 24)[q]
                        res_idx.append(k.e(f"buffer_load_dwordx2 v[{r}:{r + 1}], v{v_eo}, s[{srdn}:{srdn + 3}], {sr} offen offset:{j * 32}"))
        RST = None
        if cfg["epi"] == "resln":
            RST = va2.get(a * 2, 2)
            v_rs = va2.get()
            k.e(f"v_add_u32 v{v_rs}, s6, v{v_m}")
            k.e(f"v_lshlrev_b32 v{v_rs}, 3, v{v_rs}")
            for i in range(a):
                res_idx.append(k.e(f"buffer_load_dwordx2 v[{RST + 2 * i}:{RST + 2 * i + 1}], v{v_rs}, s[44:47], 0 offen offset:{(m0 + i) * 128}"))

        def xoff(i, s):
            return (m0 + i) * 16 * P + 64 * s
        need_x2 = xoff(a - 1, KS - 1) > 65535
        if need_x2:
            v_x2 = va2.get()
            k.e(f"v_add_u32 v{v_x2}, {4 * 16 * P}, v{v_x}")
        def issue_x(s):
            buf = s % 2
            idx = None
            for i in range(a):
                r = XF + (buf * a + i) * 4
                o = xoff(i, s)
                if o > 65535 - 64:
                    idx = k.e(f"ds_read_b128 v[{r}:{r + 3}], v{v_x2} offset:{o - 4 * 16 * P}")
                else:
                    idx = k.e(f"ds_read_b128 v[{r}:{r + 3}], v{v_x} offset:{o}")
            return idx
        xi = issue_x(0)
        for s in range(KS):
            nxt = issue_x(s + 1) if s + 1 < KS else None
            k.wait_lg(xi)
            for j in range(b):
                if (j, s) in w_idx:
                    k.wait_vm(w_idx[(j, s)])
            buf = s % 2
            for j in range(b):
                wr = WF + (j * depth + (s % depth)) * 4
                for i in range(a):
                    xr = XF + (buf * a + i) * 4
                    ar = ACC + (i * b + j) * 4
                    k.e(f"v_mfma_f32_16x16x32_bf16 v[{ar}:{ar + 3}], v[{wr}:{wr + 3}], v[{xr}:{xr + 3}], v[{ar}:{ar + 3}]")
                if has_ln:
                    k.e(f"v_mfma_f32_16x16x32_bf16 v[{CS + 4 * j}:{CS + 4 * j + 3}], v[{wr}:{wr + 3}], v[{ONES}:{ONES + 3}], v[{CS + 4 * j}:{CS + 4 * j + 3}]")
            if s + depth < KS:
                for j in range(b):
                    issue_w(j, s + depth)
            xi = nxt
        stamp_save = stamp_n[0]
        stamp()
        TE = va2.get(8, 2)
        AB = None
        if has_ln:
            AB = va2.get(2 * a, 2)
            idx = None
            for i in range(a):
                idx = k.e(f"ds_read_b64 v[{AB + 2 * i}:{AB + 2 * i + 1}], v{v_sm} offset:{LSTAT + (m0 + i) * 128}")
            k.wait_lg(idx)
        if res_idx:
            k.wait_vm(res_idx[-1])
        if fused_attn:
            v_qa = va2.get()
            k.e(f"v_mul_u32_u24 v{v_qa}, {PQ}, v{v_m}")
            k.e(f"v_lshl_add_u32 v{v_qa}, v{v_g}, 3, v{v_qa}")
            k.e("s_lshr_b32 s52, s43, 2")
            k.e("s_lshl_b32 s52, s52, 7")
            k.e("s_and_b32 s53, s43, 3")
            k.e("s_lshl_b32 s53, s53, 5")
            k.e("s_add_u32 s52, s52, s53")
            k.e(f"v_add_u32 v{v_qa}, s52, v{v_qa}")
        for i in range(a):
            sr = tile_soff(i) if not fused_attn else None
            for j in range(b):
                ar = ACC + (i * b + j) * 4
                if has_ln:
                    for e_ in range(4):
                        k.e(f"v_mul_f32 v{TE + 2}, v{CS + 4 * j + e_}, v{AB + 2 * i + 1}")
                        k.e(f"v_fma_f32 v{ar + e_}, v{ar + e_}, v{AB + 2 * i}, -v{TE + 2}")
                p0, p1 = TE, TE + 1
                if cfg["epi"] == "gelu":
                    G4 = TE + 2
                    if (i, j) == (0, 0):
                        k.e(f"v_mov_b32 v{TE + 6}, s30")
                        k.e(f"s_mov_b32 s31, {f32hex(-2.0 * 0.7978845608028654 * 1.4426950408889634 * 0.044715)}")
                    for e_ in range(4):
                        k.e(f"v_mul_f32 v{G4 + e_}, v{ar + e_}, v{ar + e_}")
                    for e_ in range(4):
                        k.e(f"v_fma_f32 v{G4 + e_}, v{G4 + e_}, s31, v{TE + 6}")
                    for e_ in range(4):
                        k.e(f"v_mul_f32 v{G4 + e_}, v{G4 + e_}, v{ar + e_}")
                    for e_ in range(4):
                        k.e(f"v_exp_f32 v{G4 + e_}, v{G4 + e_}")
                    for e_ in range(4):
                        k.e(f"v_add_f32 v{G4 + e_}, 1.0, v{G4 + e_}")
                    for e_ in range(4):
                        k.e(f"v_rcp_f32 v{G4 + e_}, v{G4 + e_}")
                    for e_ in range(4):
                        k.e(f"v_mul_f32 v{ar + e_}, v{ar + e_}, v{G4 + e_}")
                k.e(f"v_cvt_pk_bf16_f32 v{p0}, v{ar}, v{ar + 1}")
                k.e(f"v_cvt_pk_bf16_f32 v{p1}, v{ar + 2}, v{ar + 3}")
                if cfg["epi"] == "gelu":
                    pass
                elif cfg["epi"] in ("res1", "res2", "resln"):
                    for q in range(nres):
                        r = RES + ((i * b + j) * nres + q) * 2
                        for hq, pk in enumerate((p0, p1)):
                            lo, hi, rl, rh = TE + 2, TE + 3, TE + 4, TE + 5
                            k.e(f"v_lshlrev_b32 v{rl}, 16, v{r + hq}")
                            k.e(f"v_and_b32 v{rh}, 0xffff0000, v{r + hq}")
                            if cfg["epi"] == "resln":
                                mbr, rvr = RST + 2 * i, RST + 2 * i + 1
                                k.e(f"v_sub_f32 v{rl}, v{rl}, v{mbr}")
                                k.e(f"v_sub_f32 v{rh}, v{rh}, v{mbr}")
                                k.e(f"v_cvt_pk_bf16_f32 v{lo}, v{rl}, v{rh}")
                                k.e(f"v_lshlrev_b32 v{rl}, 16, v{lo}")
                                k.e(f"v_and_b32 v{rh}, 0xffff0000, v{lo}")
                                k.e(f"v_mul_f32 v{rl}, v{rl}, v{rvr}")
                                k.e(f"v_mul_f32 v{rh}, v{rh}, v{rvr}")
                                k.e(f"v_cvt_pk_bf16_f32 v{lo}, v{rl}, v{rh}")
                                k.e(f"v_lshlrev_b32 v{rl}, 16, v{lo}")
                                k.e(f"v_and_b32 v{rh}, 0xffff0000, v{lo}")
                            k.e(f"v_lshlrev_b32 v{lo}, 16, v{pk}")
                            k.e(f"v_and_b32 v{hi}, 0xffff0000, v{pk}")
                            k.e(f"v_add_f32 v{lo}, v{lo}, v{rl}")
                            k.e(f"v_add_f32 v{hi}, v{hi}, v{rh}")
                            k.e(f"v_cvt_pk_bf16_f32 v{pk}, v{lo}, v{hi}")
                if fused_attn:
                    k.e(f"ds_write_b64 v{v_qa}, v[{p0}:{p1}] offset:{LQKV + (m0 + i) * 16 * PQ + j * 32}")
                else:
                    k.e(f"buffer_store_dwordx2 v[{p0}:{p1}], v{v_eo}, s[16:19], {sr} offen offset:{j * 32}")
        if PROF:
            k.e("s_waitcnt vmcnt(0) lgkmcnt(0)")
        stamp()
        k.e(f"s_branch {endlab}")
        stamp_n[0] = stamp_save
        maxv = max(maxv, va2.n)
    k.label(endlab)
    k.e("s_nop 1")
    if fused_attn:
        k.e("s_waitcnt lgkmcnt(0)")
        k.e("s_barrier")
        va3 = VAlloc(vbase)
        emit_attention(k, va3, LQKV, "s6", "s5", 16, ("s52", "s53", "s[54:55]"))
        maxv = max(maxv, va3.n)
    if PROF:
        lab = k.newlabel("noprof")
        k.e(f"s_cmp_lg_u32 s2, {cfg.get('prof_wg', 0)}")
        k.e(f"s_cbranch_scc1 {lab}")
        k.e("s_cmp_lg_u32 s3, 0")
        k.e(f"s_cbranch_scc1 {lab}")
        k.e(f"s_load_dwordx2 s[66:67], s[0:1], {ARG['dbg']}")
        k.e("s_waitcnt lgkmcnt(0)")
        make_srd_from(k, 60, 66, 256)
        k.e("v_mov_b32 v1, 0")
        for i in range(8):
            k.e(f"v_mov_b32 v2, s{70 + 2 * i}")
            k.e(f"buffer_store_dword v2, v1, s[60:63], 0 offen offset:{4 * i}")
        k.label(lab)
    k.label(done)
    k.e("s_endpgm")
    lds = LX + ROWS * P
    return k, dict(grid=nwg, block=512, lds=lds, nvgpr=maxv, nsgpr=96 if PROF else 64)


def phase_cfgs2(L):
    xin = ("A_x", 0, D * 2, S * D * 2) if L == 0 else (None, WS.XB0, D * 2, S * D * 2)
    g = lambda n: getattr(WS, f"{n}{L}")
    buf = lambda n, cols=D: (None, g(n), cols * 2, S * cols * 2)
    cfgs = []
    qw = [dict(b=2, t0=4, m0=0, a=5), dict(b=2, t0=6, m0=0, a=5), dict(b=2, t0=8, m0=0, a=5), dict(b=2, t0=10, m0=0, a=5),
          dict(b=1, t0=0, m0=1, a=4), dict(b=1, t0=1, m0=1, a=4), dict(b=1, t0=2, m0=1, a=4), dict(b=1, t0=3, m0=1, a=4)]
    cfgs.append(("qkv", dict(K=448, TM=64, halo=16, NCB=8, tiles_per_cb=12, wp_off=WS.WP_QKV, waves=qw,
                             pro="ln", src=xin, epi="attn", attn=True, dst=buf("O"), TNcols=192)))
    cfgs.append(("wo", dict(K=448, TM=32, NCB=4, tiles_per_cb=7, wp_off=WS.WP_WO, waves=waves_even(7, 2),
                            pro="plain", src=buf("O"), epi="res1", res1=xin, dst=buf("XA"), TNcols=112)))
    cfgs.append(("w1", dict(K=448, TM=32, NCB=4, tiles_per_cb=7, wp_off=WS.WP_W1, waves=waves_even(7, 2),
                            pro="ln2", src=buf("XA"), stats=getattr(WS, f"STATS{L}"), epi="gelu", dst=buf("H"), TNcols=112)))
    cfgs.append(("w2", dict(K=448, TM=32, NCB=4, tiles_per_cb=7, wp_off=WS.WP_W2, waves=waves_even(7, 2),
                            pro="shift", src=buf("H"), epi="resln", res1=buf("XA"), stats=getattr(WS, f"STATS{L}"),
                            dst=buf("X1"), TNcols=112)))
    cfgs.append(("w3", dict(K=448, TM=64, NCB=7, tiles_per_cb=16, wp_off=WS.WP_W3, waves=waves_even(16, 4),
                            pro="ln", src=buf("X1"), epi="gelu", dst=buf("G", F), TNcols=256)))
    dst6 = buf("XB") if L == 0 else ("out", 0, D * 2, S * D * 2)
    cfgs.append(("w4", dict(K=1792, TM=32, NCB=4, tiles_per_cb=7, wp_off=WS.WP_W4, waves=waves_even(7, 2),
                            pro="plain", src=buf("G", F), epi="res2", res1=buf("X1"), res2=buf("XA"), dst=dst6,
                            TNcols=112, depth=16)))
    return cfgs

def write_file(kernels, path):
    hdr = open(f"cdna_kernels/{NAME}.s.ref").read().split("; Override launch")[0]
    out = hdr
    for (k, meta) in kernels:
        out += f"; @launch kernel={k.name} grid=({meta['grid']},1,1) block=({meta['block']},1,1) lds={meta['lds']}\n"
    out += '.amdgcn_target "amdgcn-amd-amdhsa--gfx950"\n.text\n'
    descs = ""
    seen = set()
    for (k, meta) in kernels:
        if k.name in seen:
            continue
        seen.add(k.name)
        nv = meta.get("nvgpr", 256)
        nv8 = (nv + 7) // 8 * 8
        txt, desc = kernel_text(k, nvgpr=nv8, nsgpr=meta.get("nsgpr", 102), accum=min(256, (nv8 + 3) // 4 * 4))
        out += txt
        descs += desc
    out += '.section .rodata,"a"\n' + descs
    open(path, "w").write(out)


def build_list(prof=None):
    ks = [gen_prep()]
    for L in (0, 1):
        for (nm, cfg) in phase_cfgs2(L):
            if prof and L == 0:
                cfg["prof"] = True
                cfg["prof_wg"] = 40
            ks.append(gen_gemm2(f"{nm}{L}_kernel", cfg))
    return ks
    for L in (0, 1):
        for (nm, cfg) in phase_cfgs(L):
            ks.append(gen_gemm(f"{nm}{L}_kernel", cfg))
            if nm == "qkv":
                ks.append(gen_attn(f"attn{L}_kernel", L))
    return ks


if __name__ == "__main__":
    import os
    ks = build_list(prof=os.environ.get('PROF'))
    out = sys.argv[1] if len(sys.argv) > 1 else "dev.s"
    write_file(ks, out)
    for k, meta in ks:
        print(k.name, meta)
    regions = {}
    for L in (0, 1):
        a, b = f"L{2*L}_", f"L{2*L+1}_"
        regions[a + "o"] = [getattr(WS, f"O{L}"), S, D]
        regions[a + "xa"] = [getattr(WS, f"XA{L}"), S, D]
        regions[b + "y"] = [getattr(WS, f"Y{L}"), S, D]
        regions[b + "h"] = [getattr(WS, f"H{L}"), S, D]
        regions[b + "x1"] = [getattr(WS, f"X1{L}"), S, D]
        regions[b + "g"] = [getattr(WS, f"G{L}"), S, F]
        if L == 0:
            regions[b + "xb"] = [getattr(WS, f"XB{L}"), S, D]
        regions[f"qkvp{L}"] = [getattr(WS, f"QKV{L}"), S, 1536]
    json.dump({"regions": regions, "nlaunch": None}, open("spec.json", "w"))
    print("ws bytes used:", _off[0])
```
